```python
import torch

def _softmax(x, axis=-1):
    return torch.softmax(x, dim=axis)
def _gelu(x):
    return torch.nn.functional.gelu(x, approximate="tanh")
def _silu(x):
    return torch.nn.functional.silu(x)
def _sigmoid(x):
    return torch.sigmoid(x)
def _layernorm(x, axis=-1, eps=1e-5):
    m = x.mean(dim=axis, keepdim=True)
    v = x.var(dim=axis, keepdim=True, unbiased=False)
    return (x - m) / torch.sqrt(v + eps)
def _scatter_add(tgt, idx, src, axis=0):
    return tgt.clone().index_add_(axis, idx, src)
def _segment_sum(src, seg, n):
    out = torch.zeros((n,) + src.shape[1:], dtype=src.dtype)
    return out.index_add_(0, seg, src)
def _pad(x, pw):
    flat = tuple(v for pair in reversed(pw) for v in pair)
    return torch.nn.functional.pad(x, flat)

kernel_name = 'standalone__mha_block_cached__near_ridge'

def setup_inputs():

    _w = (lambda a: (lambda t: t.to(torch.bfloat16) if t.is_floating_point() else t)(torch.as_tensor(a)))
    B, Sq, D = 16, 192, 576
    H, Sk, Dh = 32, 1024, 128
    return {
        "x": _w((lambda *s: torch.randn(*s, dtype=torch.bfloat16) * 0.8)(B, Sq, D)),
        "k_cache": _w((lambda *s: torch.randn(*s, dtype=torch.bfloat16) * 0.8)(B, H, Sk, Dh)),
        "v_cache": _w((lambda *s: torch.randn(*s, dtype=torch.bfloat16) * 0.05)(B, H, Sk, Dh)),
        "wq": _w((lambda *s: torch.randn(*s, dtype=torch.bfloat16) * 0.8)(D, H * Dh) * (D ** -0.5)),
        "wo": _w((lambda *s: torch.randn(*s, dtype=torch.bfloat16) * 0.05)(H * Dh, D) * ((H * Dh) ** -0.5)),
    }

def reference(x, k_cache, v_cache, wq, wo):
    B, Sq, D = x.shape
    H, Dh = 32, 128
    q = (lambda x, *d: x.permute(*d))((x @ wq).reshape(B, Sq, H, Dh), 0, 2, 1, 3)
    scores = torch.einsum("bhqd,bhkd->bhqk", q, k_cache) * (Dh ** -0.5)
    p = _softmax(scores, axis=-1)
    o = torch.einsum("bhqk,bhkd->bhqd", p, v_cache)
    return (lambda x, *d: x.permute(*d))(o, 0, 2, 1, 3).reshape(B, Sq, H * Dh) @ wo
```

```python
import re

_RR = re.compile(r'^(-|abs\()?([vas])(\d+)\)?$')
_RG = re.compile(r'^(-)?([vas])\[(\d+):(\d+)\]$')
TRANS = ("v_exp_f32", "v_log_f32", "v_rcp_f32", "v_rsq_f32", "v_sqrt_f32", "v_sin_f32", "v_cos_f32")

def regs_of(op):
    op = op.strip()
    m = _RR.match(op)
    if m: return {(m.group(2), int(m.group(3)))}
    m = _RG.match(op)
    if m: return {(m.group(2), i) for i in range(int(m.group(3)), int(m.group(4)) + 1)}
    if op in ("vcc", "vcc_lo", "vcc_hi"): return {("vcc", 0)}
    if op == "m0": return {("m0", 0)}
    if op in ("exec", "exec_lo", "exec_hi"): return {("exec", 0)}
    return set()

class Ins:
    __slots__ = ("mn", "rd", "wr", "kind", "states", "A", "B", "C", "passes", "data", "wide")

def v(n, cnt=1): return f"v{n}" if cnt == 1 else f"v[{n}:{n+cnt-1}]"
def a(n, cnt=1): return f"a{n}" if cnt == 1 else f"a[{n}:{n+cnt-1}]"
def s(n, cnt=1): return f"s{n}" if cnt == 1 else f"s[{n}:{n+cnt-1}]"
def R(n, cnt=1):
    return v(n, cnt) if n < 256 else a(n - 256, cnt)

class Asm:
    def __init__(self):
        self.out = []
        self.hist = []
        self.lg = []
        self.vm = []
        self.auto_vm = True
        self.nops = 0
    def raw(self, t): self.out.append(t)
    def comment(self, t): self.out.append("    ; " + t)
    def label(self, name):
        self.out.append(name + ":")
    def parse(self, text):
        t = text.split(";")[0].strip()
        parts = t.split(None, 1)
        mn = parts[0]
        rest = parts[1] if len(parts) > 1 else ""
        ops = [o.strip() for o in rest.split(",")] if rest else []
        mods = ""
        if ops:
            last = ops[-1].split()
            if len(last) > 1:
                ops[-1] = last[0]; mods = " ".join(last[1:])
        i = Ins(); i.mn = mn; i.rd = set(); i.wr = set(); i.states = 1; i.kind = "other"
        i.A = i.B = i.C = set(); i.passes = 0; i.data = set(); i.wide = False
        rs = [regs_of(o) for o in ops]
        if mn.startswith("v_mfma"):
            i.kind = "mfma"; i.wr = rs[0]; i.A = rs[1]; i.B = rs[2]; i.C = rs[3]; i.rd = rs[1] | rs[2] | rs[3]
            i.passes = 8 if "32x32x16" in mn else 4
        elif mn.startswith("v_permlane"):
            i.kind = "permlane"; i.wr = rs[0] | rs[1]; i.rd = rs[0] | rs[1]
        elif mn.startswith("v_readfirstlane") or mn.startswith("v_readlane"):
            i.kind = "readlane"; i.wr = rs[0]; i.rd = set().union(*rs[1:])
        elif mn.startswith("v_"):
            i.kind = "trans" if mn.replace("_e32", "").replace("_e64", "") in TRANS else "valu"
            i.wr = set(rs[0]); i.rd = set().union(*rs[1:]) if len(rs) > 1 else set()
            if mn.startswith(("v_add_co", "v_sub_co", "v_addc_co", "v_subb_co")): i.wr |= rs[1]; i.rd = set().union(*rs[2:])
            if mn.startswith(("v_fmac", "v_dot2c", "v_pk_fmac")): i.rd |= rs[0]
            if mn.startswith("v_cmpx"): i.wr |= {("exec", 0)}
            if "dpp" in mn or "row_" in mods or "quad_perm" in mods: i.kind = "dpp"
        elif mn.startswith("ds_read") or mn.startswith("ds_bpermute") or mn.startswith("ds_swizzle"):
            i.kind = "dsr"; i.wr = rs[0]; i.rd = set().union(*rs[1:])
        elif mn.startswith("ds_"):
            i.kind = "dsw"; i.rd = set().union(*rs)
        elif mn.startswith("buffer_load") or mn.startswith("global_load"):
            if " lds" in " " + mods or "_lds_" in mn:
                i.kind = "dma"; i.rd = set().union(*rs) | {("m0", 0)}
            else:
                i.kind = "vld"; i.wr = rs[0]; i.rd = set().union(*rs[1:])
                if "d16" in mn: i.rd |= rs[0]
        elif mn.startswith("buffer_store") or mn.startswith("buffer_atomic"):
            i.kind = "vst"; i.rd = set().union(*rs); i.data = rs[0]; i.wide = mn.endswith(("x3", "x4"))
            if mn.startswith("buffer_atomic") and "sc0" in mods: i.wr = rs[0]
        elif mn.startswith("global_store") or mn.startswith("global_atomic"):
            i.kind = "vst"; i.rd = set().union(*rs); i.data = rs[1]; i.wide = mn.endswith(("x3", "x4"))
        elif mn.startswith("buffer_"):
            i.kind = "vmisc"
        elif mn == "s_nop":
            i.kind = "nop"; i.states = int(ops[0], 0) + 1
        elif mn.startswith("s_load") or mn.startswith("s_memtime") or mn.startswith("s_memrealtime"):
            i.kind = "smem"; i.wr = rs[0]; i.rd = set().union(*rs[1:]) if len(rs) > 1 else set()
        elif mn.startswith("s_"):
            i.kind = "salu"
            if mn.startswith(("s_cmp", "s_cbranch", "s_branch", "s_waitcnt", "s_barrier", "s_endpgm", "s_setprio", "s_sleep")):
                i.rd = set().union(*rs) if rs else set()
            else:
                i.wr = set(rs[0]) if rs else set(); i.rd = set().union(*rs[1:]) if len(rs) > 1 else set()
                if "saveexec" in mn: i.wr |= {("exec", 0)}
        return i
    def need(self, c):
        need = 0; dist = 0
        VAL = ("valu", "trans", "permlane", "readlane", "dpp")
        isvalu = c.kind in VAL
        ismem = c.kind in ("dsr", "dsw", "dma", "vld", "vst")
        for p in reversed(self.hist):
            req = 0
            pv = p.kind in VAL
            vw = {r for r in p.wr if r[0] in "va"}
            sw = {r for r in p.wr if r[0] in ("s", "vcc")}
            if pv:
                if c.kind == "mfma" and vw & c.rd: req = max(req, 2)
                if c.kind in ("permlane", "dpp") and vw & c.rd: req = max(req, 2)
                if c.kind == "readlane" and vw & c.rd: req = max(req, 1)
                if p.kind == "trans" and isvalu and c.kind != "trans" and vw & c.rd: req = max(req, 1)
                if p.kind == "trans" and c.kind == "trans" and vw & c.rd: req = max(req, 1)
                if isvalu and sw & c.rd: req = max(req, 4 if c.kind == "readlane" else 2)
                if c.kind in ("dma", "vld", "vst") and sw & c.rd: req = max(req, 5)
                if c.kind == "salu" and sw & c.rd: req = max(req, 2)
                if ("exec", 0) in p.wr:
                    if c.kind in ("mfma", "permlane", "readlane"): req = max(req, 4)
                    if c.kind == "dpp": req = max(req, 5)
            if p.kind == "mfma":
                big = {4: 8, 8: 12}[p.passes]
                if c.kind == "mfma":
                    if p.wr & (c.A | c.B): req = max(req, big)
                    if p.wr & c.C:
                        if not (p.wr == c.C and p.passes == c.passes): req = max(req, {4: 6, 8: 10}[p.passes])
                    elif p.wr & c.wr and not (p.wr == c.wr): req = max(req, {4: 6, 8: 10}[p.passes])
                elif isvalu or ismem:
                    if p.wr & (c.rd | c.wr): req = max(req, big)
                    if isvalu and p.C & c.wr: req = max(req, {4: 3, 8: 7}[p.passes])
            if p.kind == "salu" and ("m0", 0) in p.wr and c.kind == "dma": req = max(req, 1)
            if p.kind == "vst" and p.wide and p.data & c.wr: req = max(req, 2)
            if p.kind == "dsw" and False: pass
            need = max(need, req - dist)
            dist += p.states
            if dist > 24: break
        return need
    def _push(self, i):
        self.hist.append(i)
        if len(self.hist) > 40: self.hist.pop(0)
    def _autowait(self, i):
        touched = i.rd | i.wr
        n = None
        for k, (dst, tag) in enumerate(self.lg):
            if dst & touched: n = len(self.lg) - 1 - k
        if n is not None: self.wait_lg(n)
        if self.auto_vm:
            n = None
            for k, (dst, tag) in enumerate(self.vm):
                if dst & touched: n = len(self.vm) - 1 - k
            if n is not None: self.wait_vm(n)
    def wait_lg(self, n):
        n = min(n, 15)
        if len(self.lg) <= n: return
        self.I(f"s_waitcnt lgkmcnt({n})")
    def wait_vm(self, n):
        n = min(n, 63)
        if len(self.vm) <= n: return
        self.I(f"s_waitcnt vmcnt({n})")
    def wait_vm_tag(self, *tags):
        n = None
        for k, (dst, tag) in enumerate(self.vm):
            if tag in tags: n = len(self.vm) - 1 - k
        if n is not None: self.wait_vm(n)
    def I(self, text, tag=None):
        for t in text.split("\n"):
            t = t.strip()
            if not t: continue
            i = self.parse(t)
            if i.mn != "s_waitcnt": self._autowait(i)
            n = self.need(i)
            if n > 0:
                self.nops += n
                while n > 0:
                    k = min(n, 16)
                    self.out.append(f"    s_nop {k-1}")
                    self._push(self.parse(f"s_nop {k-1}"))
                    n -= k
            self.out.append("    " + t)
            self._push(i)
            if i.mn == "s_waitcnt":
                m = re.search(r"lgkmcnt\((\d+)\)", t)
                if m:
                    k = int(m.group(1)); self.lg = self.lg[len(self.lg) - k:] if k < len(self.lg) and k > 0 else ([] if k == 0 else self.lg)
                m = re.search(r"vmcnt\((\d+)\)", t)
                if m:
                    k = int(m.group(1)); self.vm = self.vm[len(self.vm) - k:] if k < len(self.vm) and k > 0 else ([] if k == 0 else self.vm)
            elif i.kind in ("dsr", "dsw"): self.lg.append((set(i.wr), tag))
            elif i.kind == "smem":
                self.lg.append((set(i.wr), "smem"))
            elif i.kind in ("dma", "vld", "vst"): self.vm.append((set() if tag in ("cp", "cpf") else set(i.wr), tag))
    def text(self): return "\n".join(self.out) + "\n"
```

```python
import sys, struct, argparse
from asmlib import *

def f32(x): return "0x%08x" % struct.unpack("<I", struct.pack("<f", x))[0]

K1 = "mha_attn_kernel"
K2 = "mha_oproj_kernel"
PS = 1056; REG = 8 * PS; UNIT = 4 * REG
WQ0 = UNIT; WQS = 2 * REG; NWQ = 3
X0 = WQ0 + NWQ * WQS; XPS = 1088; XS = 24 * XPS; NX = 3
LDS1 = X0 + NX * XS
assert LDS1 <= 163840 and 4 * UNIT <= LDS1
CSCALE = 1.4426950408889634 * (128 ** -0.5)
THR = 10.0
STAMP_OFF = 0x10000000

def srd(A, d, lo, hi, size):
    A.I(f"s_mov_b32 s{d}, s{lo}\ns_mov_b32 s{d+1}, s{hi}\ns_mov_b32 s{d+2}, {size}\ns_mov_b32 s{d+3}, 0x20000")

def stamp(A, opt, idx, nst, base_wg=0):
    if opt.stamps: A.I(f"s_memrealtime s[{64+2*idx}:{65+2*idx}]" + ("\ns_waitcnt lgkmcnt(0)" if idx else ""))

def stamp_flush(A, opt, nst, wsl, wsh, wave_s, vt, first, total, lbl):
    if not opt.stamps: return
    A.I("s_waitcnt lgkmcnt(0)")
    A.I(f"s_cmp_lg_u32 s{wave_s}, 0\ns_cbranch_scc1 {lbl}")
    srd(A, 56, wsl, wsh, 0x20000000)
    A.I(f"s_mul_i32 s55, s2, {total*8}\ns_add_u32 s55, s55, {STAMP_OFF + first*8}")
    A.I(f"v_mov_b32 v{vt+2}, 0")
    for i in range(nst):
        A.I(f"v_mov_b32 v{vt}, s{64+2*i}\nv_mov_b32 v{vt+1}, s{65+2*i}")
        A.I(f"buffer_store_dwordx2 v[{vt}:{vt+1}], v{vt+2}, s[56:59], s55 offen offset:{8*i}")
        A.I("s_waitcnt vmcnt(0)")
    A.label(lbl)

def gen_k1(opt):
    A = Asm(); I = A.I
    nt = " nt" if opt.nt else ""
    vDkv, vDw, vDx, vKa, vVa, vXa, vWa, vKc, vVc, vMx = 1, 2, 3, 4, 5, 6, 7, 8, 9, 10
    vT = 11
    vL = 16
    NEG = 20
    S = 32
    POOL = 56
    Q = 104
    O = 152
    Sb = lambda qb, kb: S + qb * 8 + kb * 4
    Qf = lambda qb, ks: Q + (qb * 4 + ks) * 4
    Of = lambda qb, db: O + (qb * 8 + db) * 4
    Kf = lambda kb, ks: POOL + (kb * 4 + ks) * 4
    Vf = lambda db: POOL + ((8 + db) if db < 4 else (db - 4)) * 4
    sW, sB, sHP, sHS, sQG, sH = 32, 33, 34, 35, 36, 37
    sKVm, sWm, sXm, sT, sSW, sSR, sCnt, sThr, sLow, sC = 38, 39, 40, 41, 42, 43, 44, 45, 46, 47
    t0, t1, t2 = 48, 49, 50
    A.raw(f".p2align 8\n.type {K1},@function\n{K1}:")
    I("s_cmp_ge_u32 s2, 256\ns_cbranch_scc1 L1_end")
    stamp(A, opt, 0, 4)
    I("s_load_dwordx8 s[4:11], s[0:1], 0\ns_load_dwordx2 s[12:13], s[0:1], 56")
    I(f"v_lshrrev_b32 v{vT}, 6, v0\nv_and_b32 v0, 63, v0")
    I(f"v_readfirstlane_b32 s{sW}, v{vT}")
    I(f"s_and_b32 s{t0}, s2, 7\ns_lshr_b32 s{t1}, s2, 3")
    if opt.map == 8:
        I(f"s_and_b32 s{sB}, s{t0}, 1\ns_lshl_b32 s{sB}, s{sB}, 3\ns_and_b32 s{t2}, s{t1}, 7\ns_add_u32 s{sB}, s{sB}, s{t2}")
        I(f"s_lshr_b32 s{sHP}, s{t0}, 1\ns_lshl_b32 s{sHP}, s{sHP}, 2\ns_lshr_b32 s{t2}, s{t1}, 3\ns_add_u32 s{sHP}, s{sHP}, s{t2}")
    elif opt.map == 4:
        I(f"s_and_b32 s{sB}, s{t0}, 3\ns_lshl_b32 s{sB}, s{sB}, 2\ns_and_b32 s{t2}, s{t1}, 3\ns_add_u32 s{sB}, s{sB}, s{t2}")
        I(f"s_lshr_b32 s{sHP}, s{t0}, 2\ns_lshl_b32 s{sHP}, s{sHP}, 3\ns_lshr_b32 s{t2}, s{t1}, 2\ns_add_u32 s{sHP}, s{sHP}, s{t2}")
    else:
        I(f"s_lshl_b32 s{sB}, s{t0}, 1\ns_and_b32 s{t2}, s{t1}, 1\ns_add_u32 s{sB}, s{sB}, s{t2}")
        I(f"s_lshr_b32 s{sHP}, s{t1}, 1")
    I(f"s_lshr_b32 s{sHS}, s{sW}, 2\ns_and_b32 s{sQG}, s{sW}, 3")
    I(f"s_lshl_b32 s{sH}, s{sHP}, 1\ns_add_u32 s{sH}, s{sH}, s{sHS}")
    g, r, c, q = vT, vT + 1, vT + 2, vT + 3
    I(f"v_lshrrev_b32 v{g}, 4, v0\nv_bfe_u32 v{r}, v0, 2, 2\nv_and_b32 v{c}, 3, v0\nv_and_b32 v{q}, 15, v0")
    I(f"v_lshlrev_b32 v{vDkv}, 4, v{c}\nv_lshl_add_u32 v{vDkv}, v{g}, 6, v{vDkv}")
    I(f"v_lshl_add_u32 v{vDw}, v{r}, 13, v{vDkv}")
    I(f"v_lshl_add_u32 v{vDkv}, v{r}, 8, v{vDkv}")
    I(f"s_and_b32 s{t0}, s{sW}, 1\ns_lshl_b32 s{t1}, s{t0}, 12")
    I(f"v_add_u32 v{vDkv}, s{t1}, v{vDkv}")
    I(f"s_mul_i32 s{t0}, s{t0}, {4*PS}\ns_lshr_b32 s{t1}, s{sW}, 1\ns_mul_i32 s{sKVm}, s{t1}, {REG}\ns_add_u32 s{sKVm}, s{sKVm}, s{t0}")
    I(f"s_and_b32 s{t0}, s{sQG}, 1\ns_lshl_b32 s{t0}, s{t0}, 4\ns_lshr_b32 s{t1}, s{sQG}, 1\ns_lshl_b32 s{t1}, s{t1}, 2\ns_add_u32 s{t0}, s{t0}, s{t1}")
    I(f"s_lshl_b32 s{t0}, s{t0}, 13\ns_lshl_b32 s{t1}, s{sH}, 8\ns_add_u32 s{t0}, s{t0}, s{t1}")
    I(f"v_add_u32 v{vDw}, s{t0}, v{vDw}")
    I(f"s_mul_i32 s{sWm}, s{sW}, {2*PS}\ns_add_u32 s{sWm}, s{sWm}, {WQ0}")
    I(f"v_xor_b32 v{vDx}, v{c}, v{g}\nv_and_b32 v{vKc}, 4, v0\nv_or_b32 v{vDx}, v{vDx}, v{vKc}\nv_lshlrev_b32 v{vDx}, 4, v{vDx}")
    I(f"v_lshrrev_b32 v{vKc}, 3, v0\nv_mul_u32_u24 v{vKc}, 1152, v{vKc}\nv_add_u32 v{vDx}, v{vDx}, v{vKc}")
    I(f"s_mul_i32 s{t0}, s{sW}, {24*1152}")
    I(f"v_add_u32 v{vDx}, s{t0}, v{vDx}")
    I(f"s_mul_i32 s{sXm}, s{sW}, {3*XPS}\ns_add_u32 s{sXm}, s{sXm}, {X0}")
    I(f"v_mul_u32_u24 v{vKa}, {PS}, v{r}\nv_lshl_add_u32 v{vKa}, v{c}, 6, v{vKa}\nv_lshl_add_u32 v{vKa}, v{g}, 4, v{vKa}")
    I(f"s_mul_i32 s{t0}, s{sHS}, {2*REG}")
    I(f"v_add_u32 v{vKa}, s{t0}, v{vKa}")
    I(f"v_mul_u32_u24 v{vVa}, {PS}, v{g}\nv_lshl_add_u32 v{vVa}, v{r}, 6, v{vVa}\nv_lshl_add_u32 v{vVa}, v{c}, 3, v{vVa}")
    I(f"s_mul_i32 s{t1}, s{sHS}, {REG}\ns_add_u32 s{t1}, s{t1}, {WQ0}\ns_add_u32 s{t0}, s{t0}, {REG}")
    I(f"v_add_u32 v{vWa}, s{t1}, v{vVa}\nv_add_u32 v{vVa}, s{t0}, v{vVa}")
    I(f"v_bfe_u32 v{vXa}, v0, 1, 2\nv_xor_b32 v{vXa}, v{vXa}, v{g}\nv_lshlrev_b32 v{vXa}, 4, v{vXa}")
    I(f"v_and_b32 v{vKc}, 7, v0\nv_lshl_add_u32 v{vXa}, v{vKc}, 7, v{vXa}")
    I(f"v_bfe_u32 v{vKc}, v0, 3, 1\nv_mul_u32_u24 v{vKc}, {XPS}, v{vKc}\nv_add_u32 v{vXa}, v{vXa}, v{vKc}")
    I(f"s_mul_i32 s{t0}, s{sQG}, {6*XPS}\ns_add_u32 s{t0}, s{t0}, {X0}")
    I(f"v_add_u32 v{vXa}, s{t0}, v{vXa}")
    I("s_waitcnt lgkmcnt(0)")
    I(f"s_mul_i32 s{t0}, s{sB}, 221184\ns_add_u32 s16, s4, s{t0}\ns_addc_u32 s17, s5, 0\ns_mov_b32 s18, 221184\ns_mov_b32 s19, 0x20000")
    srd(A, 20, 10, 11, 4718592)
    I(f"s_bitcmp1_b32 s{sW}, 1\ns_cselect_b32 s24, s8, s6\ns_cselect_b32 s25, s9, s7")
    I(f"s_lshl_b32 s{t0}, s{sB}, 5\ns_add_u32 s{t0}, s{t0}, s{sH}\ns_lshl_b32 s{t0}, s{t0}, 18")
    I(f"s_add_u32 s24, s24, s{t0}\ns_addc_u32 s25, s25, 0\ns_mov_b32 s26, 262144\ns_mov_b32 s27, 0x20000")
    srd(A, 28, 12, 13, 25165824)

    def dma_x(j):
        for p in range(3):
            I(f"s_add_u32 m0, s{sXm}, {(j % NX) * XS + p * XPS}\ns_mov_b32 s{t0}, {j * 128 + p * 8 * 1152}")
            I(f"buffer_load_dwordx4 v{vDx}, s[16:19], s{t0} offen lds", tag=("x", j))
    def dma_w(st):
        for p in range(2):
            I(f"s_add_u32 m0, s{sWm}, {(st % NWQ) * WQS + p * PS}\ns_mov_b32 s{t0}, {(st * 32 + p * 8) * 8192}")
            I(f"buffer_load_dwordx4 v{vDw}, s[20:23], s{t0} offen lds", tag=("w", st))
    def dma_kv_static(u):
        I(f"s_mov_b32 s{t0}, {u * 8192}")
        for p in range(4):
            I(f"s_add_u32 m0, s{sKVm}, {(u % 4) * UNIT + 32 * p}")
            I(f"buffer_load_dwordx4 v{vDkv}, s[24:27], s{t0} offen offset:{1024*p}{nt} lds", tag=("kv", u))
    dma_x(0); dma_w(0); dma_w(1); dma_x(1); dma_kv_static(0)
    Wf = lambda db: POOL + db * 4
    Xf = lambda qb: POOL + 32 + qb * 4
    for st in range(18):
        A.comment(f"qproj step {st}")
        A.wait_vm_tag(("w", st), ("x", st >> 1))
        I("s_barrier")
        wo_ = (st % NWQ) * WQS; xo_ = ((st >> 1) % NX) * XS + (st & 1) * 64
        def rdw(db):
            for e in range(2):
                I(f"ds_read_b64_tr_b16 v[{Wf(db)+2*e}:{Wf(db)+2*e+1}], v{vWa} offset:{wo_ + e*4*PS + (db>>1)*256 + (db&1)*32}")
        for qb in range(3): I(f"ds_read_b128 {v(Xf(qb),4)}, v{vXa} offset:{xo_ + qb*2*XPS}")
        for db in range(4): rdw(db)
        if st + 2 < 18: dma_w(st + 2)
        if st % 2 == 0 and st // 2 + 2 < 9: dma_x(st // 2 + 2)
        for db in range(8):
            for qb in range(3):
                cc = "0" if st == 0 else v(Of(qb, db), 4)
                I(f"v_mfma_f32_16x16x32_bf16 {v(Of(qb,db),4)}, {v(Wf(db),4)}, {v(Xf(qb),4)}, {cc}")
                if qb == 0 and db < 4: rdw(db + 4)
    I("s_barrier")
    stamp(A, opt, 1, 4)
    dma_kv_static(1); dma_kv_static(2)
    I(f"s_mov_b32 s{sC}, {f32(CSCALE)}")
    for qb in range(3):
        for db in range(8):
            o = Of(qb, db)
            for k in range(4): I(f"v_mul_f32 v{o+k}, s{sC}, v{o+k}")
            d = Qf(qb, db >> 1) + 2 * (db & 1)
            I(f"v_cvt_pk_bf16_f32 v{d}, v{o}, v{o+1}\nv_cvt_pk_bf16_f32 v{d+1}, v{o+2}, v{o+3}")
    for qb in range(3):
        for ks in range(4):
            d = Qf(qb, ks)
            I(f"v_permlane32_swap_b32 v{d}, v{d+2}\nv_permlane32_swap_b32 v{d+1}, v{d+3}")
    for qb in range(3):
        for ks in range(4):
            d = Qf(qb, ks)
            I(f"v_permlane16_swap_b32 v{d}, v{d+2}\nv_permlane16_swap_b32 v{d+1}, v{d+3}")
    for k in range(96): I(f"v_mov_b32 v{O+k}, 0")
    for k in range(12): I(f"v_mov_b32 v{NEG+k}, 0")
    for k in range(3): I(f"v_mov_b32 v{vL+k}, 0")
    I(f"s_mov_b32 s{sT}, {3*8192}\ns_mov_b32 s{sSW}, {3*UNIT}\ns_mov_b32 s{sSR}, 0\ns_mov_b32 s{sCnt}, 32")
    I(f"s_mov_b32 s{sThr}, 0xff800000\ns_mov_b32 s{sLow}, 0xff800000")
    I(f"v_mov_b32 v{vKc}, v{vKa}\nv_mov_b32 v{vVc}, v{vVa}")
    A.auto_vm = False
    A.raw(".p2align 6")
    A.label("L1_att")
    I("s_waitcnt vmcnt(8)\ns_barrier")
    for kb in range(2):
        for ks in range(4):
            I(f"ds_read_b128 {v(Kf(kb,ks),4)}, v{vKc} offset:{kb*4*PS + ks*256}")
    I(f"s_add_u32 s{t0}, s{sKVm}, s{sSW}")
    for p in range(4):
        I(f"s_add_u32 m0, s{t0}, {32*p}")
        I(f"buffer_load_dwordx4 v{vDkv}, s[24:27], s{sT} offen offset:{1024*p}{nt} lds")
    I(f"s_add_u32 s{sT}, s{sT}, 8192")
    I(f"s_add_u32 s{sSW}, s{sSW}, {UNIT}\ns_cmp_eq_u32 s{sSW}, {4*UNIT}\ns_cselect_b32 s{sSW}, 0, s{sSW}")
    I(f"s_add_u32 s{sSR}, s{sSR}, {UNIT}\ns_cmp_eq_u32 s{sSR}, {4*UNIT}\ns_cselect_b32 s{sSR}, 0, s{sSR}")
    def rdv(db, e):
        I(f"ds_read_b64_tr_b16 v[{Vf(db)+2*e}:{Vf(db)+2*e+1}], v{vVc} offset:{e*4*PS + (db>>1)*256 + (db&1)*32}")
    vals0 = [Sb(qb, 0) + k for qb in range(3) for k in range(4)]
    vals1 = [Sb(qb, 1) + k for qb in range(3) for k in range(4)]
    mx0 = [f"v_max3_f32 v{vMx}, v{vals0[0]}, v{vals0[1]}, v{vals0[2]}"]
    rest = vals0[3:] + vals1
    mxs = mx0 + [f"v_max3_f32 v{vMx}, v{vMx}, v{rest[k]}, v{rest[k+1]}" for k in range(0, 20, 2)] + [f"v_max_f32 v{vMx}, v{vMx}, v{rest[20]}"]
    n = 0
    for kb in range(2):
        for ks in range(4):
            for qb in range(3):
                cc = v(NEG + 4 * qb, 4) if ks == 0 else v(Sb(qb, kb), 4)
                I(f"v_mfma_f32_16x16x32_bf16 {v(Sb(qb,kb),4)}, {v(Kf(kb,ks),4)}, {v(Qf(qb,ks),4)}, {cc}")
                if n < 8: rdv(n >> 1, n & 1)
                if 12 <= n < 20: rdv(4 + ((n - 12) >> 1), n & 1)
                if 18 <= n < 23: I(mxs[n - 18])
                n += 1
    for m in mxs[5:]: I(m)
    I(f"v_cmp_lt_f32 vcc, s{sThr}, v{vMx}")
    I("s_cbranch_vccnz L1_rare")
    A.label("L1_back")
    def soft(qb):
        ops = []
        b = S + qb * 8
        for k in range(8): ops.append(f"v_exp_f32 v{b+k}, v{b+k}")
        out = []
        seq = []
        for k in range(8):
            seq.append(f"v_exp_f32 v{b+k}, v{b+k}")
            if k >= 1: seq.append(f"v_add_f32 v{vL+qb}, v{vL+qb}, v{b+k-1}")
            if k >= 2 and k % 2 == 0: seq.append(f"v_cvt_pk_bf16_f32 v{b+(k-2)//2}, v{b+k-2}, v{b+k-1}")
        seq.append(f"v_add_f32 v{vL+qb}, v{vL+qb}, v{b+7}")
        seq.append(f"v_cvt_pk_bf16_f32 v{b+3}, v{b+6}, v{b+7}")
        return seq
    for x in soft(0): I(x)
    for qb in range(3):
        nxt = soft(qb + 1) if qb < 2 else [f"v_add_u32 v{vKc}, s{sSR}, v{vKa}", f"v_add_u32 v{vVc}, s{sSR}, v{vVa}"]
        per = -(-len(nxt) // 8)
        k = 0
        for db in range(8):
            I(f"v_mfma_f32_16x16x32_bf16 {v(Of(qb,db),4)}, {v(Vf(db),4)}, {v(S+qb*8,4)}, {v(Of(qb,db),4)}")
            hi = (len(nxt) * (db + 1)) // 8
            while k < hi: I(nxt[k]); k += 1
    assert not A.lg
    I(f"s_sub_u32 s{sCnt}, s{sCnt}, 1\ns_cmp_lg_u32 s{sCnt}, 0\ns_cbranch_scc1 L1_att")
    stamp(A, opt, 2, 4)
    for qb in range(3):
        l = vL + qb
        I(f"v_mov_b32 v{vT}, v{l}\nv_permlane32_swap_b32 v{vT}, v{l}\nv_add_f32 v{l}, v{l}, v{vT}")
        I(f"v_mov_b32 v{vT}, v{l}\nv_permlane16_swap_b32 v{vT}, v{l}\nv_add_f32 v{l}, v{l}, v{vT}")
        I(f"v_rcp_f32 v{l}, v{l}")
    I(f"v_lshlrev_b32 v{vKc}, 4, v0")
    for qb in range(3):
        I(f"s_mul_i32 s{t0}, s{sB}, 12\ns_mul_i32 s{t1}, s{sQG}, 3\ns_add_u32 s{t0}, s{t0}, s{t1}\ns_add_u32 s{t0}, s{t0}, {qb}")
        I(f"s_lshr_b32 s{t1}, s{t0}, 3\ns_lshl_b32 s{t1}, s{t1}, 20\ns_and_b32 s{t0}, s{t0}, 7\ns_lshl_b32 s{t0}, s{t0}, 10\ns_add_u32 s{t0}, s{t0}, s{t1}")
        I(f"s_lshl_b32 s{t1}, s{sH}, 15\ns_add_u32 s{t0}, s{t0}, s{t1}")
        for j in range(4):
            d = POOL + (qb * 4 + j) * 4
            for e in range(2):
                o = Of(qb, 2 * j + e)
                for k in range(4): I(f"v_mul_f32 v{o+k}, v{vL+qb}, v{o+k}")
                I(f"v_cvt_pk_bf16_f32 v{d+2*e}, v{o}, v{o+1}\nv_cvt_pk_bf16_f32 v{d+2*e+1}, v{o+2}, v{o+3}")
            I(f"buffer_store_dwordx4 {v(d,4)}, v{vKc}, s[28:31], s{t0} offen{opt.ost}")
            I(f"s_add_u32 s{t0}, s{t0}, 8192")
    if opt.stamps:
        I("s_waitcnt vmcnt(0)")
        stamp(A, opt, 3, 4)
        stamp_flush(A, opt, 4, 12, 13, sW, 12, 0, 8, "L1_ns")
    A.label("L1_end")
    I("s_endpgm")
    A.label("L1_rare")
    A.hist = []
    for qb in range(3):
        b = S + qb * 8
        m, t_ = vT, vT + 1
        I(f"v_max3_f32 v{m}, v{b}, v{b+1}, v{b+2}\nv_max3_f32 v{m}, v{m}, v{b+3}, v{b+4}\nv_max3_f32 v{m}, v{m}, v{b+5}, v{b+6}\nv_max_f32 v{m}, v{m}, v{b+7}")
        I(f"v_mov_b32 v{t_}, v{m}\nv_permlane32_swap_b32 v{t_}, v{m}\nv_max_f32 v{m}, v{m}, v{t_}")
        I(f"v_mov_b32 v{t_}, v{m}\nv_permlane16_swap_b32 v{t_}, v{m}\nv_max_f32 v{m}, v{m}, v{t_}")
        I(f"v_max_f32 v{m}, s{sLow}, v{m}")
        for k in range(8): I(f"v_sub_f32 v{b+k}, v{b+k}, v{m}")
        for k in range(4): I(f"v_sub_f32 v{NEG+4*qb+k}, v{NEG+4*qb+k}, v{m}")
        I(f"v_max_f32 v{t_}, 0, v{m}\nv_sub_f32 v{t_}, 0, v{t_}\nv_exp_f32 v{t_}, v{t_}")
        I(f"v_mul_f32 v{vL+qb}, v{vL+qb}, v{t_}")
        for k in range(32): I(f"v_mul_f32 v{Of(qb,0)+k}, v{Of(qb,0)+k}, v{t_}")
    I(f"s_mov_b32 s{sThr}, {f32(THR)}\ns_mov_b32 s{sLow}, 0")
    I("s_branch L1_back")
    return A.text(), 248, 256

def gen_k2(opt):
    A = Asm(); I = A.I
    LA = opt.la
    vO = 1
    vDw = 5
    vA = 6
    vT = 10
    AF = 64
    ACC = 256
    Ost = lambda st: (128 + st * 32) if st < 4 else (256 + 128 + (st - 4) * 32)
    acc = lambda f, nb: ACC + (f * 4 + nb) * 4
    sW, sMt, sNt, sLm, sOo, sWo, sCnt = 32, 33, 34, 35, 36, 37, 38
    t0, t1, t2 = 48, 49, 50
    A.raw(f".p2align 8\n.type {K2},@function\n{K2}:")
    I("s_cmp_ge_u32 s2, 216\ns_cbranch_scc1 L2_end")
    stamp(A, opt, 0, 3)
    I("s_load_dwordx4 s[4:7], s[0:1], 32\ns_load_dwordx2 s[12:13], s[0:1], 56")
    I(f"v_lshrrev_b32 v{vT}, 6, v0\nv_and_b32 v0, 63, v0")
    I(f"v_readfirstlane_b32 s{sW}, v{vT}")
    I(f"s_and_b32 s{t0}, s2, 7\ns_lshr_b32 s{t1}, s2, 3")
    I(f"s_mul_i32 s{t2}, s{t1}, 57\ns_lshr_b32 s{t2}, s{t2}, 9")
    I(f"s_mul_i32 s{sMt}, s{t0}, 3\ns_add_u32 s{sMt}, s{sMt}, s{t2}")
    I(f"s_mul_i32 s{t2}, s{t2}, 9\ns_sub_u32 s{sNt}, s{t1}, s{t2}")
    g, r, c = vT, vT + 1, vT + 2
    I(f"v_lshrrev_b32 v{g}, 4, v0\nv_bfe_u32 v{r}, v0, 2, 2\nv_and_b32 v{c}, 3, v0")
    I(f"v_lshlrev_b32 v{vT+3}, 4, v0")
    for j in range(4):
        I(f"s_add_u32 s{t0}, s{sW}, {j}\ns_and_b32 s{t0}, s{t0}, 3\ns_lshl_b32 s{t0}, s{t0}, 11")
        I(f"v_add_u32 v{vO+j}, s{t0}, v{vT+3}")
    I(f"v_bfe_u32 v{vDw}, v0, 1, 2\nv_xor_b32 v{vDw}, v{vDw}, v{g}\nv_lshlrev_b32 v{vDw}, 5, v{vDw}")
    I(f"v_and_b32 v{vT+4}, 1, v0\nv_lshl_add_u32 v{vDw}, v{vT+4}, 4, v{vDw}")
    I(f"v_lshrrev_b32 v{vT+4}, 3, v0\nv_mul_u32_u24 v{vT+4}, 1152, v{vT+4}\nv_add_u32 v{vDw}, v{vDw}, v{vT+4}")
    I(f"s_lshl_b32 s{t0}, s{sNt}, 7")
    I(f"v_add_u32 v{vDw}, s{t0}, v{vDw}")
    I(f"s_lshl_b32 s{sLm}, s{sW}, 15")
    I(f"v_lshrrev_b32 v{vT+4}, 2, v0\nv_lshlrev_b32 v{vT+4}, 7, v{vT+4}\nv_lshl_add_u32 v{vT+4}, v{c}, 3, v{vT+4}\nv_add_u32 v{vT+4}, s{sLm}, v{vT+4}")
    I(f"v_bfe_u32 v{vT+5}, v0, 3, 2")
    for nb in range(4):
        I(f"v_xor_b32 v{vA+nb}, {nb}, v{vT+5}\nv_lshl_add_u32 v{vA+nb}, v{vA+nb}, 5, v{vT+4}")
    I("s_waitcnt lgkmcnt(0)")
    I(f"s_lshl_b32 s{t0}, s{sMt}, 20\ns_lshl_b32 s{t1}, s{sW}, 18\ns_add_u32 s{t0}, s{t0}, s{t1}")
    I(f"s_add_u32 s16, s12, s{t0}\ns_addc_u32 s17, s13, 0\ns_mov_b32 s18, {32*8192}\ns_mov_b32 s19, 0x20000")
    I(f"s_mul_i32 s{t0}, s{sW}, {1024*1152}\ns_add_u32 s20, s4, s{t0}\ns_addc_u32 s21, s5, 0\ns_mov_b32 s22, {1024*1152}\ns_mov_b32 s23, 0x20000")
    srd(A, 24, 6, 7, 3538944)
    A.auto_vm = False
    I(f"s_mov_b32 s{sOo}, 0\ns_mov_b32 s{sWo}, 0")
    def ld_w(st):
        L = []
        for p in range(4):
            L.append(f"s_add_u32 m0, s{sLm}, {(st % 8) * 4096 + p * 1024}\nbuffer_load_dwordx4 v{vDw}, s[20:23], s{sWo} offen lds\ns_add_u32 s{sWo}, s{sWo}, {8*1152}")
        return L
    def ld_o(st):
        L = []
        for f in range(8):
            t = f"buffer_load_dwordx4 {R(Ost(st % 8) + f * 4, 4)}, v{vO + (f >> 1)}, s[16:19], s{sOo} offen offset:{(f & 1) * 1024}{opt.old}"
            if f == 7: t += f"\ns_add_u32 s{sOo}, s{sOo}, 8192"
            L.append(t)
        return L
    def rd_a(st):
        L = []
        for nb in range(4):
            for e in range(2):
                d = AF + (st & 1) * 16 + nb * 4 + 2 * e
                L.append(f"ds_read_b64_tr_b16 v[{d}:{d+1}], v{vA+nb} offset:{(st % 8) * 4096 + e * 2048}")
        return L
    for x in ld_w(0): I(x)
    for st in range(LA):
        for x in ld_w(st + 1) + ld_o(st): I(x)
    for k in range(128): I(f"v_accvgpr_write_b32 a{k}, 0")
    I(f"s_waitcnt vmcnt({12*LA})")
    for x in rd_a(0): I(x)
    I(f"s_mov_b32 s{sCnt}, 4")
    I("s_waitcnt lgkmcnt(0)")
    A.raw(".p2align 6")
    A.label("L2_loop")
    for st in range(8):
        I(f"s_waitcnt vmcnt({12*(LA-1)}) lgkmcnt(0)")
        fill = rd_a(st + 1) + ld_w(st + LA + 1) + ld_o(st + LA)
        n = 0
        for f in range(8):
            for nb in range(4):
                I(f"v_mfma_f32_16x16x32_bf16 {R(acc(f,nb),4)}, {v(AF + (st & 1) * 16 + nb * 4, 4)}, {R(Ost(st) + f * 4, 4)}, {R(acc(f,nb),4)}")
                if n < len(fill): I(fill[n])
                n += 1
    I(f"s_sub_u32 s{sCnt}, s{sCnt}, 1\ns_cmp_lg_u32 s{sCnt}, 0\ns_cbranch_scc1 L2_loop")
    I("s_waitcnt vmcnt(0) lgkmcnt(0)\ns_barrier")
    stamp(A, opt, 1, 3)
    I(f"v_lshlrev_b32 v{vT+3}, 4, v0")
    for j in range(1, 4):
        I(f"s_add_u32 s{t0}, s{sW}, {j}\ns_and_b32 s{t0}, s{t0}, 3\ns_mul_i32 s{t0}, s{t0}, {24*1024}")
        I(f"v_add_u32 v{vT+4}, s{t0}, v{vT+3}")
        for k in range(8):
            I(f"ds_write_b128 v{vT+4}, {R(ACC + (8 * j + k) * 4, 4)} offset:{((j - 1) * 8 + k) * 1024}")
    I("s_waitcnt lgkmcnt(0)\ns_barrier")
    I(f"s_mul_i32 s{t0}, s{sW}, {24*1024}")
    I(f"v_add_u32 v{vT+4}, s{t0}, v{vT+3}")
    P = 128
    for k in range(24): I(f"ds_read_b128 {v(P + 4*k, 4)}, v{vT+4} offset:{k*1024}")
    SUM = 64
    for k in range(32): I(f"v_accvgpr_read_b32 v{SUM+k}, a{k}")
    for j in range(3):
        for k in range(32): I(f"v_add_f32 v{SUM+k}, v{SUM+k}, v{P + 32*j + k}")
    PK = 96
    for k in range(16): I(f"v_cvt_pk_bf16_f32 v{PK+k}, v{SUM+2*k}, v{SUM+2*k+1}")
    for k in range(4):
        d = PK + 4 * k
        I(f"v_permlane32_swap_b32 v{d}, v{d+2}\nv_permlane32_swap_b32 v{d+1}, v{d+3}")
    for k in range(4):
        d = PK + 4 * k
        I(f"v_permlane16_swap_b32 v{d}, v{d+2}\nv_permlane16_swap_b32 v{d+1}, v{d+3}")
    I(f"v_and_b32 v{vT+3}, 15, v0\nv_mul_u32_u24 v{vT+3}, 1152, v{vT+3}\nv_lshl_add_u32 v{vT+3}, v{g}, 4, v{vT+3}")
    I(f"s_lshl_b32 s{t0}, s{sMt}, 7\ns_lshl_b32 s{t1}, s{sW}, 5\ns_add_u32 s{t0}, s{t0}, s{t1}\ns_mul_i32 s{t0}, s{t0}, 1152\ns_lshl_b32 s{t1}, s{sNt}, 7\ns_add_u32 s{t0}, s{t0}, s{t1}")
    I(f"s_add_u32 s{t1}, s{t0}, {16*1152}")
    for f2 in range(2):
        for pr in range(2):
            I(f"buffer_store_dwordx4 {v(PK + (f2*2+pr)*4, 4)}, v{vT+3}, s[24:27], s{t0+f2} offen offset:{pr*64}")
    if opt.stamps:
        I("s_waitcnt vmcnt(0)")
        stamp(A, opt, 2, 3)
        I("s_memrealtime s[70:71]")
        stamp_flush(A, opt, 4, 12, 13, sW, vT, 4, 8, "L2_ns")
    A.label("L2_end")
    I("s_endpgm")
    return A.text(), 512, 256

def kd(name, vg, acc):
    return f""".p2align 6
.amdhsa_kernel {name}
  .amdhsa_next_free_vgpr {vg}
  .amdhsa_next_free_sgpr 96
  .amdhsa_accum_offset {acc}
  .amdhsa_group_segment_fixed_size 0
  .amdhsa_kernarg_size 64
  .amdhsa_user_sgpr_count 2
  .amdhsa_user_sgpr_kernarg_segment_ptr 1
  .amdhsa_system_sgpr_workgroup_id_x 1
.end_amdhsa_kernel
"""

HDR = open("standalone__mha_block_cached__near_ridge.s.ref").read().split("; Override")[0] if __import__("os").path.exists("standalone__mha_block_cached__near_ridge.s.ref") else ""

def main():
    ap = argparse.ArgumentParser()
    ap.add_argument("-o", default="k.s")
    ap.add_argument("--stamps", action="store_true")
    ap.add_argument("--nt", type=int, default=1)
    ap.add_argument("--map", type=int, default=8)
    ap.add_argument("--la", type=int, default=5)
    ap.add_argument("--ost", default="")
    ap.add_argument("--old", default="")
    opt = ap.parse_args()
    opt.ost = (" " + opt.ost) if opt.ost else ""
    opt.old = (" " + opt.old) if opt.old else ""
    t1, vg1, ac1 = gen_k1(opt)
    t2, vg2, ac2 = gen_k2(opt)
    txt = HDR
    txt += f"; @launch kernel={K1} grid=(256,1,1) block=(512,1,1) lds={LDS1}\n"
    txt += f"; @launch kernel={K2} grid=(216,1,1) block=(256,1,1) lds=131072\n"
    txt += '.amdgcn_target "amdgcn-amd-amdhsa--gfx950"\n.text\n'
    txt += f".globl {K1}\n" + t1 + f".globl {K2}\n" + t2
    txt += '.section .rodata,"a"\n' + kd(K1, vg1, 248) + kd(K2, vg2, ac2)
    open(opt.o, "w").write(txt)
main()
```

```python
import sys, struct, argparse, os
from asmlib import *

def f32(x): return "0x%08x" % struct.unpack("<I", struct.pack("<f", x))[0]
KN = "standalone__mha_block_cached__near_ridge_kernel"
MF = "v_mfma_f32_16x16x32_bf16"
UNIT = 32768; NS = 5
WQ0 = UNIT; WQS = 16384; NWQ = 3
X0 = WQ0 + NWQ * WQS; XPS = 1088; XS = 24 * XPS; NX = 3
LDS1 = 163840
assert X0 + NX * XS <= LDS1
AG = 256
CSCALE = 1.4426950408889634 * (128 ** -0.5)
THR = 10.0
STAMP_OFF = 0x10000000
PART = 0x2000000; FLAGS = 0x3000000; WSZ = 0x3100000
BIG = 10**9
NST = 12

def srd(A, d, lo, hi, size):
    A.I(f"s_mov_b32 s{d}, s{lo}\ns_mov_b32 s{d+1}, s{hi}\ns_mov_b32 s{d+2}, {size}\ns_mov_b32 s{d+3}, 0x20000")

class Sched:
    def __init__(self, A, cap=2):
        self.A = A; self.cap = cap; self.q = {"rd": [], "sa": [], "va": []}; self.pre = {}
    def add(self, qn, text, cost=1, e=0, d=BIG, tag=None): self.q[qn].append((cost, e, d, text, tag))
    def before(self, i, text): self.pre.setdefault(i, []).append(text)
    def emit(self, f):
        for t in f[3].split("\n"):
            if t.endswith(":"): self.A.label(t[:-1])
            else: self.A.I(t, tag=f[4])
    def flush(self, i):
        for qn in ("rd", "sa", "va"):
            q = self.q[qn]; last = -1
            for k, f in enumerate(q):
                if f[2] <= i: last = k
            for f in q[:last + 1]: self.emit(f)
            del q[:last + 1]
    def run(self, mf):
        for i, m in enumerate(mf):
            self.flush(i)
            for t in self.pre.get(i, []): self.A.I(t)
            self.A.I(m)
            b = self.cap - len(self.pre.get(i + 1, []))
            for qn in ("rd", "sa", "va"):
                q = self.q[qn]
                while q and q[0][1] <= i and q[0][0] <= b:
                    f = q.pop(0); self.emit(f); b -= f[0]
        self.flush(BIG)

def gen(opt):
    A = Asm(); I = A.I
    nt = " nt"
    vDe, vDo, vMx, vT = 1, 2, 6, 7
    AD = {0: (3, 4, 5), 1: (248, 249, 250), 2: (251, 252, 253)}
    vK, vVe, vVo = AD[0]
    vDw, vDx, vXa, vWa, vL16, vXb = 10, 11, 12, 13, 14, 52
    vDwo = 12
    NEG, S, KF, VF, Q, ACC = 16, 40, 88, 120, 152, 56
    O, L, ONES, PRE = AG, AG + 192, AG + 216, AG + 112
    Sb = lambda qb, kb: S + qb * 8 + kb * 4
    Qf = lambda qb, ks: Q + (qb * 4 + ks) * 4
    Of = lambda qb, db: O + (qb * 8 + db) * 4
    Af = lambda qb, db: ACC + (qb * 8 + db) * 4
    Kf = lambda kb, ks: KF + (kb * 4 + ks) * 4
    Vf = lambda db: VF + db * 4
    sW, sB, sHP, sHS, sQH, sH, sKQ, sNG, sJ, sID = 48, 49, 50, 51, 52, 53, 54, 55, 56, 57
    sKVm, sWm, sXm, sC, sThr, sWOm, sHb, sT = 58, 59, 60, 62, 61, 64, 66, 65
    sRet = 70
    t0, t1, t2, t3 = 72, 73, 74, 75
    XD, WD, KD, OD, WOD, OUTD, DBD = "s[20:23]", "s[24:27]", "s[28:31]", "s[32:35]", "s[36:39]", "s[40:43]", "s[44:47]"
    SST = 76
    def stamp(i):
        if opt.stamps: I(f"s_memrealtime s[{SST+2*i}:{SST+2*i+1}]\ns_memtime s[100:101]\ns_waitcnt lgkmcnt(0)\ns_mov_b32 s{SST+2*i+1}, s100")
    A.raw(f".globl {KN}\n.p2align 8\n.type {KN},@function\n{KN}:")
    I("s_cmp_ge_u32 s2, 256\ns_cbranch_scc1 L_end")
    stamp(0)
    I("s_load_dwordx16 s[4:19], s[0:1], 0")
    if opt.cpf:
        I("s_getpc_b64 s[36:37]")
        A.label("L_pc")
        I("s_mov_b32 s38, L_last-L_pc\ns_mov_b32 s39, 0x20000")
        I(f"s_lshr_b32 s{t0}, s2, 3\ns_and_b32 s{t0}, s{t0}, 15\ns_lshl_b32 s{t0}, s{t0}, 7")
        I(f"v_lshrrev_b32 v9, 2, v0\nv_lshlrev_b32 v9, 11, v9")
        I(f"buffer_load_dword v8, v9, s[36:39], s{t0} offen", tag="cpf")
    I(f"v_lshrrev_b32 v{vT}, 6, v0\nv_and_b32 v0, 63, v0")
    I(f"v_readfirstlane_b32 s{sW}, v{vT}")
    I(f"s_and_b32 s{t0}, s2, 7\ns_lshr_b32 s{t1}, s2, 3")
    I(f"s_and_b32 s{sB}, s{t0}, 1\ns_lshl_b32 s{sB}, s{sB}, 3\ns_and_b32 s{t2}, s{t1}, 7\ns_add_u32 s{sB}, s{sB}, s{t2}")
    I(f"s_lshr_b32 s{sKQ}, s{t0}, 1\ns_lshr_b32 s{sNG}, s{t1}, 3\ns_lshl_b32 s{sHP}, s{sKQ}, 2\ns_add_u32 s{sHP}, s{sHP}, s{sNG}")
    I(f"s_lshr_b32 s{sHS}, s{sW}, 1\ns_and_b32 s{sQH}, s{sW}, 1")
    I(f"s_lshl_b32 s{sH}, s{sHP}, 1\ns_add_u32 s{sH}, s{sH}, s{sHS}")
    g, r, c, tt = 16, 17, 18, 19
    I(f"v_lshrrev_b32 v{g}, 4, v0\nv_bfe_u32 v{r}, v0, 2, 2\nv_and_b32 v{c}, 3, v0\nv_lshlrev_b32 v{vL16}, 4, v0")
    I(f"v_xor_b32 v{vDx}, v{c}, v{g}\nv_and_b32 v{tt}, 4, v0\nv_or_b32 v{vDx}, v{vDx}, v{tt}\nv_lshlrev_b32 v{vDx}, 4, v{vDx}")
    I(f"v_lshrrev_b32 v{tt}, 3, v0\nv_mul_u32_u24 v{tt}, 1152, v{tt}\nv_add_u32 v{vDx}, v{vDx}, v{tt}")
    I(f"s_mul_i32 s{t0}, s{sW}, {48*1152}\ns_mul_i32 s{t1}, s{sB}, 221184\ns_add_u32 s{t0}, s{t0}, s{t1}")
    I(f"v_add_u32 v{vDx}, s{t0}, v{vDx}")
    I(f"s_mul_i32 s{sXm}, s{sW}, {6*XPS}\ns_add_u32 s{sXm}, s{sXm}, {X0}")
    I(f"v_lshlrev_b32 v{vDe}, 4, v{c}\nv_lshl_add_u32 v{vDe}, v{g}, 6, v{vDe}")
    I(f"v_lshl_add_u32 v{vDw}, v{r}, 13, v{vDe}")
    I(f"s_lshl_b32 s{t0}, s{sQH}, 15\ns_lshl_b32 s{t1}, s{sH}, 8\ns_add_u32 s{t0}, s{t0}, s{t1}")
    I(f"v_add_u32 v{vDw}, s{t0}, v{vDw}")
    I(f"s_lshl_b32 s{sWm}, s{sW}, 12\ns_add_u32 s{sWm}, s{sWm}, {WQ0}")
    I(f"v_lshl_add_u32 v{vDe}, v{r}, 8, v{vDe}\nv_xor_b32 v{vDo}, 32, v{vDe}")
    I(f"s_lshl_b32 s{sKVm}, s{sW}, 13")
    I("s_waitcnt lgkmcnt(0)")
    srd(A, 20, 4, 5, 3538944)
    srd(A, 24, 10, 11, 4718592)
    def dma_x(j, ps=range(6)):
        return [(f"s_add_u32 m0, s{sXm}, {(j % NX) * XS + p * XPS}\ns_mov_b32 s{t0}, {j * 128 + p * 8 * 1152}\nbuffer_load_dwordx4 v{vDx}, {XD}, s{t0} offen{opt.xw} lds", ("x", j)) for p in ps]
    def dma_w(st):
        return [(f"s_add_u32 m0, s{sWm}, {(st % NWQ) * WQS + p * 1024}\ns_mov_b32 s{t0}, {(st * 32 + p * 8) * 8192}\nbuffer_load_dwordx4 v{vDw}, {WD}, s{t0} offen{opt.xw} lds", ("w", st)) for p in range(4)]
    def dma_kv(u):
        return [(f"s_add_u32 m0, s{sKVm}, {(u % NS) * UNIT + (p >> 2) * 4096}\ns_mov_b32 s{t0}, {u * 8192 + (p >> 2) * 4096}\nbuffer_load_dwordx4 v{vDo if p & 1 else vDe}, {KD}, s{t0} offen offset:{1024*(p&3)}{nt} lds", ("kv", u)) for p in range(8)]
    def pre(u, p):
        if u == NS: return AG + 220 + 4 * p
        return (20 + 4 * p) if u == 1 else PRE + ((u - 2) * 8 + p) * 4
    def ld_kv(u):
        return [(f"s_mov_b32 s{t0}, {u * 8192 + (p >> 2) * 4096}\nbuffer_load_dwordx4 {R(pre(u, p), 4)}, v{vDo if p & 1 else vDe}, {KD}, s{t0} offen offset:{1024*(p&3)}{nt}", ("kvr", u)) for p in range(8)]
    def issue(L_):
        for t, tag in L_: I(t, tag=tag)
    issue(dma_x(0) + dma_w(0) + dma_w(1))
    I(f"s_bitcmp1_b32 s{sW}, 0\ns_cselect_b32 s28, s8, s6\ns_cselect_b32 s29, s9, s7")
    I(f"s_lshl_b32 s{t0}, s{sB}, 5\ns_add_u32 s{t0}, s{t0}, s{sH}\ns_lshl_b32 s{t0}, s{t0}, 18")
    I(f"s_add_u32 s28, s28, s{t0}\ns_addc_u32 s29, s29, 0\ns_mov_b32 s30, 262144\ns_mov_b32 s31, 0x20000")
    srd(A, 32, 18, 19, WSZ)
    srd(A, 36, 12, 13, 4718592)
    srd(A, 40, 14, 15, 3538944)
    srd(A, 44, 16, 17, 256)
    I(f"s_lshl_b32 s{sJ}, s{sQH}, 1\ns_add_u32 s{sJ}, s{sJ}, s{sHS}\ns_lshl_b32 s{sID}, s{sB}, 4\ns_add_u32 s{sID}, s{sID}, s{sHP}")
    def lane0(dst):
        I(f"v_or_b32 v{dst}, s{sW}, v0\nv_min_u32 v{dst}, 1, v{dst}\nv_lshlrev_b32 v{dst}, 30, v{dst}")
    lane0(53)
    I(f"v_mov_b32 v54, 0\nv_mov_b32 v55, 0\ns_lshl_b32 s{t0}, s{sID}, 7\ns_add_u32 s{t0}, s{t0}, {FLAGS}")
    I(f"buffer_store_dwordx2 v[54:55], v53, {OD}, s{t0} offen sc1", tag="clr")
    I(f"v_and_b32 v{tt}, 1, v{r}\nv_lshlrev_b32 v{tt}, 1, v{tt}\nv_xor_b32 v{tt}, v{tt}, v{g}\nv_lshlrev_b32 v{vK}, 4, v{tt}")
    I(f"v_lshl_add_u32 v{vK}, v{c}, 6, v{vK}\nv_lshl_add_u32 v{vK}, v{r}, 10, v{vK}")
    I(f"s_lshl_b32 s{t0}, s{sHS}, 14")
    I(f"v_add_u32 v{vK}, s{t0}, v{vK}")
    I(f"v_lshlrev_b32 v{vWa}, 10, v{g}\nv_lshl_add_u32 v{vWa}, v{r}, 6, v{vWa}")
    I(f"v_lshl_add_u32 v{vVe}, v{c}, 3, v{vWa}\nv_and_b32 v{tt}, 1, v{g}\nv_lshl_add_u32 v{vVe}, v{tt}, 5, v{vVe}")
    I(f"s_add_u32 s{t0}, s{t0}, 8192")
    I(f"v_add_u32 v{vVe}, s{t0}, v{vVe}\nv_xor_b32 v{vVo}, 32, v{vVe}")
    I(f"s_lshl_b32 s{t1}, s{sHS}, 13\ns_add_u32 s{t1}, s{t1}, {WQ0}")
    I(f"v_lshl_add_u32 v{vWa}, v{c}, 4, v{vWa}\nv_add_u32 v{vWa}, s{t1}, v{vWa}")
    I(f"v_bfe_u32 v{vXa}, v0, 1, 2\nv_xor_b32 v{vXa}, v{vXa}, v{g}\nv_lshlrev_b32 v{vXa}, 4, v{vXa}")
    I(f"v_and_b32 v{tt}, 7, v0\nv_lshl_add_u32 v{vXa}, v{tt}, 7, v{vXa}")
    I(f"v_bfe_u32 v{tt}, v0, 3, 1\nv_mul_u32_u24 v{tt}, {XPS}, v{tt}\nv_add_u32 v{vXa}, v{vXa}, v{tt}")
    I(f"s_mul_i32 s{t0}, s{sJ}, {6*XPS}\ns_add_u32 s{t0}, s{t0}, {X0}\ns_xor_b32 s{t1}, s{sJ}, 1\ns_mul_i32 s{t1}, s{t1}, {6*XPS}\ns_add_u32 s{t1}, s{t1}, {X0}")
    I(f"v_add_u32 v{vXb}, s{t1}, v{vXa}\nv_add_u32 v{vXa}, s{t0}, v{vXa}")
    I(f"v_mov_b32 v{vT}, 0x3f803f80")
    for k in range(4): I(f"v_accvgpr_write_b32 {R(ONES+k)}, v{vT}")
    I(f"s_mov_b32 s{sC}, {f32(CSCALE)}\ns_mov_b32 s{sC+1}, {f32(CSCALE)}\ns_mov_b32 s{sThr}, {f32(THR)}")
    issue(dma_x(1, range(3)) + dma_w(2) + dma_x(1, range(3, 6)))
    for k in range(3): I(f"v_add_u32 v{AD[1][k]}, 0x10000, v{AD[0][k]}\nv_add_u32 v{AD[2][k]}, 0x20000, v{AD[0][k]}")
    I(f"v_add_u32 v254, s{sKVm}, v{vL16}\nv_add_u32 v255, 0x10000, v254\nv_add_u32 v15, 0x20000, v254")
    for d in range(4):
        I(f"s_add_u32 s{t0}, s{sNG}, {d}\ns_and_b32 s{t0}, s{t0}, 3\ns_lshl_b32 s{t0}, s{t0}, 1\ns_lshl_b32 s{t1}, s{sKQ}, 3\ns_add_u32 s{t0}, s{t0}, s{t1}\ns_add_u32 s{t0}, s{t0}, s{sHS}")
        I(f"s_lshl_b32 s{t0}, s{t0}, 3\ns_add_u32 s{t0}, s{t0}, s{sQH}\ns_mul_i32 s{sHb+d}, s{t0}, {16*1152}")
    I(f"s_mul_i32 s{sWOm}, s{sHS}, 12288\ns_lshl_b32 s{t0}, s{sQH}, 11\ns_add_u32 s{sWOm}, s{sWOm}, s{t0}")
    WA = {0: 254, 1: 255, 2: 15}
    def wr_kv(u):
        sl = u % NS
        return [f"ds_write_b128 v{WA[sl >> 1]}, {R(pre(u, p), 4)} offset:{(sl & 1) * UNIT + p * 1024}" for p in range(8)]
    Wf = lambda st, db: AG + (st % 2) * 56 + db * 4
    Xf = lambda st, qb: AG + (st % 2) * 56 + 32 + qb * 4
    def reads(st):
        wo_ = (st % NWQ) * WQS; xo_ = ((st >> 1) % NX) * XS + (st & 1) * 64
        R_ = [f"ds_read_b128 {R(Xf(st,qb),4)}, v{vXa if qb < 3 else vXb} offset:{xo_ + (qb%3)*2*XPS}" for qb in range(6)]
        for db in range(8):
            for e in range(2):
                R_.append(f"ds_read_b64_tr_b16 {R(Wf(st,db)+2*e,2)}, v{vWa} offset:{wo_ + e*4096 + (db>>1)*256 + (db&1)*8}")
        return R_
    A.wait_vm_tag(("w", 0), ("x", 0))
    I("s_barrier")
    stamp(1)
    for x in reads(0): I(x)
    kvq = dma_kv(0)
    for u in range(1, opt.rpf + 1): kvq += ld_kv(u)
    def qpack(qb):
        L_ = []
        for db in range(7, -1, -1):
            o = Af(qb, db); d = Qf(qb, db >> 1) + 2 * (db & 1)
            L_.append(f"v_pk_mul_f32 v[{o}:{o+1}], v[{o}:{o+1}], s[{sC}:{sC+1}]\nv_pk_mul_f32 v[{o+2}:{o+3}], v[{o+2}:{o+3}], s[{sC}:{sC+1}]")
            L_.append(f"v_cvt_pk_bf16_f32 v{d+1}, v{o+2}, v{o+3}\nv_cvt_pk_bf16_f32 v{d}, v{o}, v{o+1}")
        return L_
    for st in range(18):
        A.comment(f"qproj step {st}")
        I("s_waitcnt lgkmcnt(0)")
        if st + 1 < 18: A.wait_vm_tag(("w", st + 1), ("x", (st + 1) >> 1))
        I("s_barrier")
        if st == 6:
            A.wait_vm_tag("clr")
            I(f"v_mov_b32 v54, 1\nbuffer_store_byte v54, v53, {DBD}, s{sID} offen sc1", tag="clr2")
        D = []
        if st + 3 < 18: D += dma_w(st + 3)
        if st == 0: D += dma_x(2)
        elif st % 2 == 1 and (st - 1) // 2 + 3 < 9: D += dma_x((st - 1) // 2 + 3, range(3))
        elif st % 2 == 0 and (st - 2) // 2 + 3 < 9: D += dma_x((st - 2) // 2 + 3, range(3, 6))
        if st >= opt.kvpos and st < 17:
            n = -(-len(kvq) // (17 - st))
            D += kvq[:n]; kvq = kvq[n:]
        SC = Sched(A)
        if st < 17:
            R_ = reads(st + 1)
            for k in range(0, 22, 2): SC.add("rd", R_[k] + "\n" + R_[k + 1], cost=2, e=2 * k)
            for k, (t, tag) in enumerate(D): SC.add("sa", t, cost=2, e=1 + (k * 44) // len(D), tag=tag)
            mf = [f"{MF} {v(Af(qb,db),4)}, {R(Wf(st,db),4)}, {R(Xf(st,qb),4)}, " + ("0" if st == 0 else v(Af(qb, db), 4)) for db in range(8) for qb in range(6)]
        else:
            D = kvq
            for u in range(opt.rpf + 1, opt.hdu + 1): D = D + dma_kv(u)
            if opt.xu: D = D + ld_kv(NS)
            W_ = []
            for u in range(1, opt.rpf + 1): W_ += wr_kv(u)
            P_ = []
            for qb in range(5, -1, -1): P_ += [(t, (5 - qb) * 8 + 11) for t in qpack(qb)]
            nW = min(len(W_), 20)
            for k in range(0, nW, 2): SC.add("rd", W_[k] + "\n" + W_[k + 1], cost=2, e=k // 2)
            W_ = W_[nW:]
            for k, (t, e_) in enumerate(P_):
                SC.add("va", t, cost=2, e=e_)
                if W_ and k % 3 == 2: SC.add("va", W_.pop(0), cost=1, e=e_)
                if D and k % opt.dsp == 0:
                    t2_, tag = D.pop(0); SC.add("va", t2_, cost=2, e=e_, tag=tag)
            for t in W_: SC.add("va", t, cost=1)
            for t2_, tag in D: SC.add("va", t2_, cost=2, tag=tag)
            mf = [f"{MF} {v(Af(qb,db),4)}, {R(Wf(st,db),4)}, {R(Xf(st,qb),4)}, {v(Af(qb,db),4)}" for qb in range(5, -1, -1) for db in range(7, -1, -1)]
        SC.run(mf)
    I(f"v_bfe_u32 v{vDwo}, v0, 1, 2\nv_lshrrev_b32 v{vT}, 4, v0\nv_xor_b32 v{vDwo}, v{vDwo}, v{vT}\nv_lshlrev_b32 v{vDwo}, 5, v{vDwo}")
    I(f"v_and_b32 v{vT}, 1, v0\nv_lshl_add_u32 v{vDwo}, v{vT}, 4, v{vDwo}")
    I(f"v_lshrrev_b32 v{vT}, 3, v0\nv_mul_u32_u24 v{vT}, 1152, v{vT}\nv_add_u32 v{vDwo}, v{vDwo}, v{vT}")
    I(f"s_lshl_b32 s{t0}, s{sNG}, 8")
    I(f"v_add_u32 v{vDwo}, s{t0}, v{vDwo}")
    I("s_waitcnt lgkmcnt(0)")
    stamp(2)
    if opt.tl: I(f"s_mov_b32 s3, 0\nv_mov_b32 v10, s{SST}")
    def dma_wo(i, slot):
        L_ = []
        for rgl in range(2):
            for ln in range(3):
                t = f"s_add_u32 m0, s{sWOm}, {slot * UNIT + (ln * 4 + rgl) * 1024 - 128 * ln}\n"
                if ln == 0: t += f"s_add_u32 s{sT}, s{sHb + (i >> 2)}, {((i & 3) * 32 + rgl * 8) * 1152}\n"
                L_.append((t + f"buffer_load_dwordx4 v{vDwo}, {WOD}, s{sT} offen offset:{128*ln}{opt.wld} lds", ("wo", i)))
        return L_
    done = set(range(0, max(opt.rpf, opt.hdu) + 1)) | ({NS} if opt.xu else set())
    units = [u for u in range(32) if u not in done]
    plan = {t: [] for t in range(32)}
    npc = 8 * len(units); ts = max(0.05, units[0] - 4 + 0.05); last = 0
    for k in range(npc):
        u = units[k // 8]; p = k % 8
        tau = max(ts + (opt.tend - ts) * k / npc, u - 4 + 0.05 + 0.02 * p, last + 0.02); last = tau
        t = f"buffer_load_dwordx4 v{vDo if p & 1 else vDe}, {KD}, s{sT} offen offset:{1024*(p&3)}{nt} lds"
        if p % 4 == 0: plan[int(tau)].append((tau - int(tau), f"s_add_u32 m0, s{sKVm}, {(u % NS) * UNIT + (p >> 2) * 4096}\ns_mov_b32 s{sT}, {u * 8192 + (p >> 2) * 4096}", None, 2))
        plan[int(tau)].append((tau - int(tau), t, ("kv", u), 1))
    slot_of = {}
    W0 = []
    for i in range(4):
        slot_of[i] = (32 + i) % NS
        W0 += [(i, x) for x in dma_wo(i, slot_of[i])]
    for k, (i, (t, tag)) in enumerate(W0):
        tau = max(last + 0.02, opt.tend + (31.9 - opt.tend) * k / 24, 28 + i + 0.05); last = tau
        assert tau < 32
        plan[int(tau)].append((tau - int(tau), t, tag, 2))
    if opt.wpf:
        I(f"s_lshr_b32 s{t0}, s2, 3\ns_lshl_b32 s{t1}, s{sKQ}, 5\ns_add_u32 s{t0}, s{t0}, s{t1}\ns_lshl_b32 s{t0}, s{t0}, 2\ns_add_u32 s{t0}, s{t0}, s{sW}\ns_mul_i32 s{t0}, s{t0}, 9216")
        I(f"v_lshlrev_b32 v11, 7, v0\nv_add_u32 v11, s{t0}, v11\nv_and_b32 v13, 7, v0\nv_lshlrev_b32 v13, 7, v13\ns_add_u32 s{t0}, s{t0}, 8192")
        I(f"v_add_u32 v13, s{t0}, v13")
        plan[opt.wpf].append((0.97, f"buffer_load_dword v11, v11, {WOD}, 0 offen{opt.wpp}", "wpf", 1))
        plan[opt.wpf + 1].append((0.97, f"buffer_load_dword v13, v13, {WOD}, 0 offen{opt.wpp}", "wpf", 1))
    sites = []
    def pv(qb, init):
        m = [f"{MF} {R(Of(qb,db),4)}, {v(Vf(db),4)}, {v(S+qb*8,4)}, " + ("0" if init else R(Of(qb, db), 4)) for db in range(8)]
        m.append(f"{MF} {R(L+4*qb,4)}, {R(ONES,4)}, {v(S+qb*8,4)}, " + ("0" if init else R(L + 4 * qb, 4)))
        return m
    def qk(qb, init):
        m = []
        for kb in range(2):
            for ks in range(4):
                cc = ("0" if init else v(NEG + 4 * qb, 4)) if ks == 0 else v(Sb(qb, kb), 4)
                m.append(f"{MF} {v(Sb(qb,kb),4)}, {v(Kf(kb,ks),4)}, {v(Qf(qb,ks),4)}, {cc}")
        return m
    def E(qb):
        b = S + qb * 8; L_ = []
        for h in range(2):
            for k in range(4): L_.append(f"v_exp_f32 v{b+4*h+k}, v{b+4*h+k}")
            L_.append(f"v_cvt_pk_bf16_f32 v{b+2*h}, v{b+4*h}, v{b+4*h+1}\nv_cvt_pk_bf16_f32 v{b+2*h+1}, v{b+4*h+2}, v{b+4*h+3}")
        return L_
    def chk(qa, init):
        m = vMx; t_ = vT; L_ = []
        if init:
            for qb in (qa, qa + 1):
                b = S + qb * 8
                L_.append(f"v_max3_f32 v{m}, v{b}, v{b+1}, v{b+2}\nv_max3_f32 v{m}, v{m}, v{b+3}, v{b+4}")
                L_.append(f"v_max3_f32 v{m}, v{m}, v{b+5}, v{b+6}\nv_max_f32 v{m}, v{m}, v{b+7}")
                L_.append(f"v_mov_b32 v{t_}, v{m}"); L_.append(f"v_permlane32_swap_b32 v{t_}, v{m}\nv_max_f32 v{m}, v{m}, v{t_}")
                L_.append(f"v_mov_b32 v{t_}, v{m}"); L_.append(f"v_permlane16_swap_b32 v{t_}, v{m}\nv_max_f32 v{m}, v{m}, v{t_}")
                for k in range(0, 8, 2): L_.append(f"v_sub_f32 v{b+k}, v{b+k}, v{m}\nv_sub_f32 v{b+k+1}, v{b+k+1}, v{m}")
                for k in range(0, 4, 2): L_.append(f"v_sub_f32 v{NEG+4*qb+k}, 0, v{m}\nv_sub_f32 v{NEG+4*qb+k+1}, 0, v{m}")
            return L_
        b = S + qa * 8; m2 = vT + 2
        L_.append(f"v_max3_f32 v{m}, v{b}, v{b+1}, v{b+2}\nv_max3_f32 v{m2}, v{b+8}, v{b+9}, v{b+10}")
        L_.append(f"v_max3_f32 v{m}, v{m}, v{b+3}, v{b+4}\nv_max3_f32 v{m2}, v{m2}, v{b+11}, v{b+12}")
        L_.append(f"v_max3_f32 v{m}, v{m}, v{b+5}, v{b+6}\nv_max3_f32 v{m2}, v{m2}, v{b+13}, v{b+14}")
        L_.append(f"v_max3_f32 v{m}, v{m}, v{b+7}, v{b+15}\nv_max_f32 v{m}, v{m}, v{m2}")
        L_.append(f"v_cmp_lt_f32 vcc, s{sThr}, v{m}")
        return L_
    def body(t):
        cur = t < 32; prev = t > 0; icur = t == 0; iprev = t == 1
        sl = t % NS; so = (sl & 1) * UNIT; aK, aVe, aVo = AD[sl >> 1]
        if cur: A.wait_vm_tag(("kv", t))
        I("s_barrier")
        order = [("qk", 5, 1), ("pv", 2, 1), ("qk", 0, 0), ("pv", 3, 1), ("qk", 1, 0), ("pv", 4, 1), ("qk", 2, 0), ("pv", 5, 1), ("qk", 3, 0), ("pv", 0, 0), ("qk", 4, 0), ("pv", 1, 0)]
        mf = []; st_ = {}; en = {}
        for kind, qb, pr in order:
            if (pr and not prev) or (not pr and not cur): continue
            ini = iprev if pr else icur
            st_[(kind, qb, pr)] = len(mf)
            mf += qk(qb, ini) if kind == "qk" else pv(qb, ini)
            en[(kind, qb, pr)] = len(mf) - 1
        n = len(mf)
        SC = Sched(A)
        if cur:
            k0 = 0 if prev else -100
            for i in range(0, 8, 2):
                tx = "\n".join(f"ds_read_b128 {v(Kf(j>>2,j&3),4)}, v{aK} offset:{so + (j>>2)*4096 + (j&3)*256}" for j in (i, i + 1))
                SC.add("rd", tx, cost=2, e=k0 + i + 1, d=st_[("qk", 0, 0)])
            extra = wr_kv(NS) if (t == 1 and opt.xu) else []
            for k in range(0, len(extra), 2): SC.add("rd", extra[k] + "\n" + extra[k + 1], cost=2, e=20 + 2 * k)
            v0_ = st_[("pv", 5, 1)] if prev else st_[("qk", 1, 0)]
            for db in range(8):
                tx = "\n".join(f"ds_read_b64_tr_b16 {v(Vf(db)+2*e,2)}, v{aVo if db & 1 else aVe} offset:{so + e*4096 + (db>>1)*256}" for e in range(2))
                SC.add("rd", tx, cost=2, e=v0_ + db, d=st_[("pv", 0, 0)])
            if prev and opt.tl:
                SC.before(st_[("qk", 0, 0)] - 4, "s_memrealtime s[100:101]")
                SC.before(st_[("qk", 0, 0)] + 1, f"v_writelane_b32 v10, s100, {t-1}")
            if prev: SC.before(st_[("qk", 0, 0)], "s_waitcnt lgkmcnt(0)")
            SC.before(st_[("pv", 0, 0)], "s_waitcnt lgkmcnt(0)")
            for fr, tx, tag, co in plan[t]: SC.add("sa", tx, cost=co, e=int(fr * n), tag=tag)
        else:
            SC.add("sa", f"s_lshl_b32 s{t0}, s{sB}, 4\nv_mov_b32 v{vDe}, 0", cost=2)
            SC.add("sa", f"buffer_load_dwordx4 v[248:251], v{vDe}, {DBD}, s{t0} offen sc1", tag="dbg")
        seq = []
        def addE(qb, d): seq.extend((x, 0, d) for x in E(qb))
        def addchk(qa, pr, d):
            ini = iprev if pr else icur
            e = en[("qk", qa + 1, pr)] + opt.lat
            C_ = [(x, e, d) for x in chk(qa, ini)]
            if ini: seq.extend(C_); return
            tail = seq[len(seq) - opt.brd:] if len(seq) >= opt.brd else []
            del seq[len(seq) - len(tail):]
            dd = min([d] + [x[2] for x in tail])
            seq.extend((x, e_, dd) for x, e_, _ in C_)
            seq.extend(tail)
            sites.append((qa, t))
            seq.append((f"s_cbranch_vccnz L_stub{qa}_{t}\nL_back{qa}_{t}:", e, d))
        if prev:
            addE(3, st_[("pv", 3, 1)])
            addchk(4, 1, st_[("pv", 4, 1)]); addE(4, st_[("pv", 4, 1)]); addE(5, st_[("pv", 5, 1)])
        if cur:
            addchk(0, 0, st_[("pv", 0, 0)]); addE(0, st_[("pv", 0, 0)]); addE(1, st_[("pv", 1, 0)])
            addchk(2, 0, BIG); addE(2, BIG)
        for x, e, d in seq: SC.add("va", x, cost=(1 if "L_back" in x else (2 if ("\n" in x or "v_exp" in x) else 1)), e=e, d=d)
        SC.run(mf)
        if A.lg: I("s_waitcnt lgkmcnt(0)")
    for t in range(33): body(t)
    stamp(3)
    GA = 16
    acc = lambda q3, nb: GA + (q3 * 9 + nb) * 4
    AF = AG + 220
    RC, TMP = 124, 136
    aB, aC = (1, 2, 3, 4), (252, 253, 254, 255)
    vE0, vE1 = 5, 6
    for qb in range(6): I(f"v_accvgpr_read_b32 v{RC+qb*2}, {R(L+4*qb)}")
    for qb in range(6): I(f"v_rcp_f32 v{RC+qb*2}, v{RC+qb*2}")
    I(f"s_lshl_b32 s{t0}, s{sB}, 5\ns_add_u32 s{t0}, s{t0}, s{sH}\ns_lshl_b32 s{t0}, s{t0}, 2\ns_xor_b32 s{t1}, s{sJ}, 1\ns_add_u32 s{t1}, s{t1}, s{t0}\ns_add_u32 s{t0}, s{t0}, s{sJ}")
    I(f"s_mul_i32 s{t0}, s{t0}, 12288\ns_mul_i32 s{t1}, s{t1}, 12288")
    for qb in range(6): I(f"v_mov_b32 v{RC+qb*2+1}, v{RC+qb*2}")
    XSL = 31 % NS
    lo2, lo3 = slot_of[0], slot_of[1]
    def exaddr(d0, d1, sw):
        I(f"s_lshl_b32 s{t2}, s{sw}, 13\ns_add_u32 s{t2}, s{t2}, {XSL*UNIT}")
        I(f"v_add_u32 v{d0}, s{t2}, v{vL16}")
        I(f"s_lshr_b32 s{t2}, s{sw}, 1\ns_mul_i32 s{t2}, s{t2}, {(lo3-lo2)*UNIT}\ns_and_b32 s{t3}, s{sw}, 1\ns_lshl_b32 s{t3}, s{t3}, 12\ns_add_u32 s{t2}, s{t2}, s{t3}\ns_add_u32 s{t2}, s{t2}, {lo2*UNIT+24576}")
        I(f"v_add_u32 v{d1}, s{t2}, v{vL16}")
    exaddr(vE0, vE1, sW)
    k = 0
    for half in (1, 0):
        for ks in range(4):
            for q3 in range(3):
                qb = 3 * half + q3; d = Qf(qb, ks); tmp = TMP + (k % 2) * 8; k += 1
                f = ks * 3 + q3
                for kk in range(8): I(f"v_accvgpr_read_b32 v{tmp+kk}, {R(Of(qb, 2*ks) + kk)}")
                for kk in range(0, 8, 2): I(f"v_pk_mul_f32 v[{tmp+kk}:{tmp+kk+1}], v[{tmp+kk}:{tmp+kk+1}], v[{RC+qb*2}:{RC+qb*2+1}]")
                for kk in range(4): I(f"v_cvt_pk_bf16_f32 v{d+kk}, v{tmp+2*kk}, v{tmp+2*kk+1}")
                I(f"buffer_store_dwordx4 {v(d,4)}, v{vL16}, {OD}, s{t0+half} offen offset:{(f&3)*1024} sc1", tag="ost")
                if f % 4 == 3: I(f"s_add_u32 s{t0+half}, s{t0+half}, 4096")
                if half: I(f"ds_write_b128 v{vE0 if f < 8 else vE1}, {v(d,4)} offset:{(f%8)*1024}")
    stamp(4)
    I(f"v_lshrrev_b32 v{vT}, 2, v0\nv_lshlrev_b32 v{vT}, 7, v{vT}\nv_and_b32 v{vT+1}, 3, v0\nv_lshl_add_u32 v{vT}, v{vT+1}, 3, v{vT}\nv_bfe_u32 v{vT+1}, v0, 3, 2")
    for kk in range(4):
        I(f"s_add_u32 s{t2}, s{sNG}, {kk}\ns_and_b32 s{t3}, s{t2}, 3\ns_lshr_b32 s{t2}, s{t2}, 2\ns_lshl_b32 s{t2}, s{t2}, 12")
        I(f"v_xor_b32 v{aB[kk]}, s{t3}, v{vT+1}\nv_lshl_add_u32 v{aB[kk]}, v{aB[kk]}, 5, v{vT}\nv_add_u32 v{aB[kk]}, s{t2}, v{aB[kk]}")
    sOwn, sOth = sXm, sWm
    I(f"s_mul_i32 s{sOwn}, s{sHS}, 12288\ns_sub_u32 s{sOth}, 12288, s{sOwn}")
    I(f"s_xor_b32 s{sKVm}, s{sW}, 2")
    exaddr(vT + 1, vT + 2, sKVm)
    H = [(i, w_) for i in range(16) for w_ in (0, 1)]
    def Bf(i, w_, q3):
        d = i >> 2; ks = i & 3
        if d in (0, 3): return Qf(3 * w_ + q3, ks)
        return AG + (d - 1) * 96 + ((3 * w_ + q3) * 4 + ks) * 4
    def setaddr(n):
        i, w_ = H[n]
        return [f"s_add_u32 s{t2}, s{sOth if w_ else sOwn}, {slot_of[i]*UNIT}\nv_add_u32 v{aC[0]}, s{t2}, v{aB[0]}",
                f"v_add_u32 v{aC[1]}, s{t2}, v{aB[1]}\nv_add_u32 v{aC[2]}, s{t2}, v{aB[2]}", f"v_add_u32 v{aC[3]}, s{t2}, v{aB[3]}"]
    def rda(nb): return "\n".join(f"ds_read_b64_tr_b16 {R(AF+nb*4+2*e,2)}, v{aC[nb&3]} offset:{(nb>>2)*4096 + e*2048}" for e in range(2))
    def ldB(d):
        L_ = []
        pre_ = f"s_add_u32 s{t0}, s{sNG}, {d}\ns_and_b32 s{t0}, s{t0}, 3\ns_lshl_b32 s{t0}, s{t0}, 1\ns_lshl_b32 s{t1}, s{sKQ}, 3\ns_add_u32 s{t0}, s{t0}, s{t1}\ns_add_u32 s{t0}, s{t0}, s{sHS}\n"
        pre_ += f"s_lshl_b32 s{t1}, s{sB}, 5\ns_add_u32 s{t0}, s{t0}, s{t1}\ns_xor_b32 s{t1}, s{t0}, 1\ns_lshl_b32 s{t0}, s{t0}, 2\ns_lshl_b32 s{t1}, s{t1}, 2\ns_add_u32 s{t0}, s{t0}, s{sJ}\ns_add_u32 s{t1}, s{t1}, s{sJ}\n"
        pre_ += f"s_mul_i32 s{t0}, s{t0}, 12288\ns_mul_i32 s{t1}, s{t1}, 12288\n"
        for ks in range(4):
            for w_ in range(2):
                for q3 in range(3):
                    tx = f"buffer_load_dwordx4 {R(Bf(4*d+ks, w_, q3),4)}, v{vL16}, {OD}, s{t0+w_} offen offset:{q3*1024} sc1"
                    if q3 == 2: tx += f"\ns_add_u32 s{t0+w_}, s{t0+w_}, 3072"
                    L_.append(pre_ + tx); pre_ = ""
        return L_
    def spin(name, load, cmpv):
        I(f"s_mov_b32 s{t3}, 0x200000")
        A.label(f"L_spin{name}")
        I(load); I("s_waitcnt vmcnt(0)")
        I(cmpv)
        I(f"s_cmp_eq_u64 vcc, exec\ns_cbranch_scc1 L_go{name}")
        I(f"s_sleep 2\ns_sub_u32 s{t3}, s{t3}, 1\ns_cmp_lg_u32 s{t3}, 0\ns_cbranch_scc1 L_spin{name}")
        A.label(f"L_go{name}")
    I("v_and_b32 v248, v248, v249\nv_and_b32 v250, v250, v251\nv_and_b32 v248, v248, v250")
    I(f"v_cmp_eq_u32 vcc, 0x01010101, v248\ns_cmp_eq_u64 vcc, exec\ns_cbranch_scc1 L_goC")
    sv = (list(A.vm), list(A.lg))
    I(f"s_lshl_b32 s{t0}, s{sB}, 4\nv_mov_b32 v{TMP}, 0")
    spin("C", f"buffer_load_dwordx4 v[248:251], v{TMP}, {DBD}, s{t0} offen sc1", "v_and_b32 v248, v248, v249\nv_and_b32 v250, v250, v251\nv_and_b32 v248, v248, v250\nv_cmp_eq_u32 vcc, 0x01010101, v248")
    A.vm, A.lg = sv
    lane0(248)
    I(f"v_mov_b32 v249, 1\nv_and_b32 v250, 3, v0\nv_lshlrev_b32 v251, 9, v250\nv_lshlrev_b32 v250, 7, v250")
    for x in setaddr(0): I(x)
    I("s_waitcnt lgkmcnt(0)")
    A.wait_vm_tag(*[("wo", i) for i in range(4)])
    I("s_barrier")
    for nb in range(9): I(rda(nb))
    for f in range(12): I(f"ds_read_b128 {v(Qf(3 + f % 3, f // 3),4)}, v{vT+1 if f < 8 else vT+2} offset:{(f%8)*1024}")
    I("s_waitcnt lgkmcnt(0)")
    free = []; nxt = 4; Bq = []; Wq = []
    for n, (i, w_) in enumerate(H):
        A.comment(f"oproj half-step {n}")
        if n % 2 == 1 and n < 31:
            if H[n + 1][0] >= 4: A.wait_vm_tag(("wo", H[n + 1][0]))
            if n == opt.fl: A.wait_vm_tag("ost")
            I("s_barrier")
            if n == opt.fl:
                I(f"s_lshl_b32 s{t0}, s{sID}, 7\ns_add_u32 s{t0}, s{t0}, {FLAGS}")
                I(f"buffer_store_dword v249, v248, {OD}, s{t0} offen sc1", tag="f1")
                stamp(5)
            free.append(XSL if n == 1 else slot_of[i - 1])
        if n == opt.pl:
            I(f"s_and_b32 s{t0}, s{sID}, 0xfc\ns_lshl_b32 s{t0}, s{t0}, 7\ns_add_u32 s{t0}, s{t0}, {FLAGS}")
            spin("1", f"buffer_load_dword v{TMP}, v250, {OD}, s{t0} offen sc1", f"v_cmp_eq_u32 vcc, 1, v{TMP}")
            stamp(6)
            Bq = ldB(1) + ldB(2) + ldB(3)
        SC = Sched(A)
        while free and nxt < 16:
            slot_of[nxt] = free.pop(0); Wq += dma_wo(nxt, slot_of[nxt]); nxt += 1
        nb_ = opt.b0 if n < 9 else opt.b1
        if n >= 8: assert 72 - len(Bq) >= (n - 7) * 3
        if n < 8 and n >= opt.pl: assert 72 - len(Bq) + nb_ <= 48
        D1 = [(x, "B") for x in Bq[:nb_]]; Bq = Bq[nb_:]
        D2 = Wq[:3]; Wq = Wq[3:]
        D = []
        while D1 or D2:
            if D1: D.append(D1.pop(0))
            if D1 and len(D1) > 2 * len(D2): D.append(D1.pop(0))
            if D2: D.append(D2.pop(0))
        if n + 1 < len(H):
            for x in setaddr(n + 1): SC.add("va", x, cost=2, d=2)
            for nb in range(9): SC.add("rd", rda(nb), cost=2, e=3 * nb + 2)
        if n > 0: SC.before(0, "s_waitcnt lgkmcnt(4)")
        for k, (x, tag) in enumerate(D): SC.add("sa", x, cost=2, e=3 + (k * 23) // len(D), tag=tag)
        mf = [f"{MF} {v(acc(q3,nb),4)}, {R(AF+nb*4,4)}, {R(Bf(i,w_,q3),4)}, " + ("0" if n == 0 else v(acc(q3, nb), 4)) for nb in range(9) for q3 in range(3)]
        SC.run(mf)
    assert not Wq
    assert nxt == 16 and not Bq
    stamp(7)
    KS = [s_ for s_ in range(NS) if s_ not in (slot_of[15], slot_of[14])][0]
    I(f"v_add_u32 v{vT}, {KS*UNIT}, v{vL16}")
    I(f"s_cmp_eq_u32 s{sJ}, s{sKQ}\ns_cbranch_scc1 L_keep")
    PK = 152
    I(f"s_lshl_b32 s{t0}, s{sB}, 2\ns_add_u32 s{t0}, s{t0}, s{sNG}\ns_lshl_b32 s{t0}, s{t0}, 2\ns_add_u32 s{t0}, s{t0}, s{sJ}\ns_lshl_b32 s{t0}, s{t0}, 2\ns_add_u32 s{t0}, s{t0}, s{sKQ}\ns_lshl_b32 s{t0}, s{t0}, 14\ns_add_u32 s{t0}, s{t0}, {PART}")
    I(f"v_lshlrev_b32 v{vT+1}, 3, v0")
    for q3 in range(3):
        for t_ in range(4):
            d = PK + (q3 * 4 + t_) * 4; o = acc(q3, 2 * t_)
            for kk in range(4): I(f"v_cvt_pk_bf16_f32 v{d+kk}, v{o+2*kk}, v{o+2*kk+1}")
            I(f"buffer_store_dwordx4 {v(d,4)}, v{vL16}, {OD}, s{t0} offen offset:{t_*1024} sc1")
        I(f"s_add_u32 s{t0}, s{t0}, 4096")
    for q3 in range(3):
        d = PK + 48 + 2 * q3; o = acc(q3, 8)
        I(f"v_cvt_pk_bf16_f32 v{d}, v{o}, v{o+1}\nv_cvt_pk_bf16_f32 v{d+1}, v{o+2}, v{o+3}")
        I(f"buffer_store_dwordx2 {v(d,2)}, v{vT+1}, {OD}, s{t0} offen offset:{q3*512} sc1")
    I("s_branch L_join")
    A.label("L_keep")
    A.hist = []
    I("s_nop 7")
    for f in range(27): I(f"ds_write_b128 v{vT}, {v(GA+4*f,4)} offset:{f*1024}")
    A.label("L_join")
    I("s_waitcnt vmcnt(0) lgkmcnt(0)\ns_barrier")
    I(f"s_lshl_b32 s{t0}, s{sID}, 7\ns_add_u32 s{t0}, s{t0}, {FLAGS+4}")
    I(f"buffer_store_dword v249, v248, {OD}, s{t0} offen sc1")
    stamp(8)
    SUM = 16
    I(f"s_lshl_b32 s{t1}, s{sW}, 11\ns_min_u32 s{t2}, s{sW}, 2\ns_mul_i32 s{t3}, s{t2}, 9216\ns_add_u32 s{t3}, s{t3}, 8192")
    I(f"v_add_u32 v{vT+1}, s{t1}, v{vT}\nv_add_u32 v{vT}, s{t3}, v{vT}")
    for q3 in range(3):
        for e in range(2): I(f"ds_read_b128 {v(SUM+(q3*2+e)*4,4)}, v{vT+1} offset:{q3*9216+e*1024}")
    I(f"ds_read_b128 {v(SUM+24,4)}, v{vT}")
    I(f"s_and_b32 s{t0}, s{sID}, 0xf3\ns_lshl_b32 s{t0}, s{t0}, 7\ns_add_u32 s{t0}, s{t0}, {FLAGS+4}")
    spin("2", f"buffer_load_dword v{TMP}, v251, {OD}, s{t0} offen sc1", f"v_cmp_eq_u32 vcc, 1, v{TMP}")
    stamp(9)
    I(f"s_lshl_b32 s{t0}, s{sB}, 2\ns_add_u32 s{t0}, s{t0}, s{sNG}\ns_lshl_b32 s{t0}, s{t0}, 2\ns_add_u32 s{t0}, s{t0}, s{sKQ}\ns_lshl_b32 s{t0}, s{t0}, 16\ns_add_u32 s{t0}, s{t0}, {PART}")
    I(f"s_lshl_b32 s{t1}, s{sW}, 10\ns_lshl_b32 s{t2}, s{t2}, 9\ns_add_u32 s{t2}, s{t2}, 12288")
    I(f"v_add_u32 v{vT}, s{t1}, v{vL16}\nv_add_u32 v{vT+1}, 4096, v{vT}\nv_add_u32 v{vT+2}, 8192, v{vT}\nv_lshlrev_b32 v{vMx}, 3, v0\nv_add_u32 v{vMx}, s{t2}, v{vMx}")
    LD = 64
    for d in range(1, 4):
        I(f"s_add_u32 s{t1}, s{sKQ}, {d}\ns_and_b32 s{t1}, s{t1}, 3\ns_lshl_b32 s{t1}, s{t1}, 14\ns_add_u32 s{t1}, s{t1}, s{t0}")
        for q3 in range(3): I(f"buffer_load_dwordx4 {v(LD+(d-1)*16+q3*4,4)}, v{vT+q3}, {OD}, s{t1} offen sc1")
        I(f"buffer_load_dwordx2 {v(LD+(d-1)*16+12,2)}, v{vMx}, {OD}, s{t1} offen sc1")
    I(f"v_and_b32 v{vDe}, 15, v0\nv_mul_u32_u24 v{vDe}, 1152, v{vDe}\nv_lshrrev_b32 v{vDo}, 4, v0\nv_lshl_add_u32 v3, v{vDo}, 3, v{vDe}\nv_lshl_add_u32 v{vDe}, v{vDo}, 4, v{vDe}")
    I(f"s_lshl_b32 s{t0}, s{sB}, 2\ns_add_u32 s{t0}, s{t0}, s{sKQ}\ns_mul_i32 s{t0}, s{t0}, {48*1152}\ns_mul_i32 s{t1}, s{sNG}, 288\ns_add_u32 s{t0}, s{t0}, s{t1}")
    I(f"s_mul_i32 s{t2}, s{sW}, {16*1152}\ns_add_u32 s{t2}, s{t2}, s{t0}\ns_add_u32 s{t2}, s{t2}, 256\ns_cmp_eq_u32 s{sW}, 3\ns_cselect_b32 s{t2}, 0x40000000, s{t2}")
    I(f"s_lshl_b32 s{t1}, s{sW}, 6\ns_add_u32 s{t0}, s{t0}, s{t1}")
    for d in range(3):
        for kk in range(14):
            x = LD + d * 16 + kk
            I(f"v_lshlrev_b32 v{TMP+(kk%2)*2}, 16, v{x}\nv_and_b32 v{TMP+(kk%2)*2+1}, 0xffff0000, v{x}")
            I(f"v_pk_add_f32 v[{SUM+2*kk}:{SUM+2*kk+1}], v[{SUM+2*kk}:{SUM+2*kk+1}], v[{TMP+(kk%2)*2}:{TMP+(kk%2)*2+1}]")
    for kk in range(14): I(f"v_cvt_pk_bf16_f32 v{PK+kk}, v{SUM+2*kk}, v{SUM+2*kk+1}")
    for sw in ("32", "16"):
        for q3 in range(3):
            d = PK + 4 * q3
            I(f"v_permlane{sw}_swap_b32 v{d}, v{d+2}\nv_permlane{sw}_swap_b32 v{d+1}, v{d+3}")
    for q3 in range(3):
        I(f"buffer_store_dwordx4 {v(PK+4*q3,4)}, v{vDe}, {OUTD}, s{t0} offen")
        I(f"s_add_u32 s{t0}, s{t0}, {16*1152}")
    I(f"buffer_store_dwordx2 {v(PK+12,2)}, v3, {OUTD}, s{t2} offen")
    if opt.stamps:
        I("s_waitcnt vmcnt(0)")
        stamp(10); stamp(11)
        I("s_mov_b32 s34, 0x20000000")
        if opt.tl:
            I(f"s_lshl_b32 s{t0}, s2, 2\ns_add_u32 s{t0}, s{t0}, s{sW}\ns_lshl_b32 s{t0}, s{t0}, 8\ns_add_u32 s{t0}, s{t0}, 0x11000000\nv_lshlrev_b32 v11, 2, v0")
            I(f"buffer_store_dword v10, v11, {OD}, s{t0} offen")
        I(f"s_cmp_lg_u32 s{sW}, 0\ns_cbranch_scc1 L_end")
        I(f"s_mul_i32 s{t0}, s2, {NST*8}\ns_add_u32 s{t0}, s{t0}, {STAMP_OFF}\nv_mov_b32 v18, 0")
        for i in range(NST):
            I(f"v_mov_b32 v16, s{SST+2*i}\nv_mov_b32 v17, s{SST+2*i+1}")
            I(f"buffer_store_dwordx2 v[16:17], v18, {OD}, s{t0} offen offset:{8*i}\ns_waitcnt vmcnt(0)")
    A.label("L_end")
    I("s_endpgm")
    for qa, t in sites:
        A.label(f"L_stub{qa}_{t}")
        I(f"s_call_b64 s[{sRet}:{sRet+1}], L_rare{qa}\ns_branch L_back{qa}_{t}")
    for qa in (0, 2, 4):
        A.label(f"L_rare{qa}")
        A.hist = []
        for qb in (qa, qa + 1):
            b = S + qb * 8; m, t_ = vMx, vT
            I(f"v_max3_f32 v{m}, v{b}, v{b+1}, v{b+2}\nv_max3_f32 v{m}, v{m}, v{b+3}, v{b+4}\nv_max3_f32 v{m}, v{m}, v{b+5}, v{b+6}\nv_max_f32 v{m}, v{m}, v{b+7}")
            I(f"v_mov_b32 v{t_}, v{m}\nv_permlane32_swap_b32 v{t_}, v{m}\nv_max_f32 v{m}, v{m}, v{t_}")
            I(f"v_mov_b32 v{t_}, v{m}\nv_permlane16_swap_b32 v{t_}, v{m}\nv_max_f32 v{m}, v{m}, v{t_}")
            I(f"v_max_f32 v{m}, 0, v{m}")
            for k in range(8): I(f"v_sub_f32 v{b+k}, v{b+k}, v{m}")
            for k in range(4): I(f"v_sub_f32 v{NEG+4*qb+k}, v{NEG+4*qb+k}, v{m}")
            I(f"v_sub_f32 v{t_}, 0, v{m}\nv_exp_f32 v{t_}, v{t_}")
            for r_ in [L + 4 * qb + k for k in range(4)] + [Of(qb, 0) + k for k in range(32)]:
                I(f"v_accvgpr_read_b32 v{t_+1}, {R(r_)}\nv_mul_f32 v{t_+1}, v{t_+1}, v{t_}\nv_accvgpr_write_b32 {R(r_)}, v{t_+1}")
        I(f"s_setpc_b64 s[{sRet}:{sRet+1}]")
    A.label("L_last")
    I("s_endpgm")
    return A.text()

REF = "standalone__mha_block_cached__near_ridge.s.ref"
HDR = open(REF).read().split("; Override")[0] if os.path.exists(REF) else ""

def main():
    ap = argparse.ArgumentParser()
    ap.add_argument("-o", default="k.s")
    ap.add_argument("--stamps", action="store_true")
    ap.add_argument("--tl", action="store_true")
    ap.add_argument("--xw", default="nt"); ap.add_argument("--wld", default="")
    ap.add_argument("--kvpos", type=int, default=2)
    ap.add_argument("--rpf", type=int, default=2)
    ap.add_argument("--hdu", type=int, default=3)
    ap.add_argument("--xu", type=int, default=0)
    ap.add_argument("--lat", type=int, default=3)
    ap.add_argument("--brd", type=int, default=2)
    ap.add_argument("--dsp", type=int, default=3)
    ap.add_argument("--tend", type=float, default=29.5)
    ap.add_argument("--fl", type=int, default=3)
    ap.add_argument("--pl", type=int, default=6)
    ap.add_argument("--cpf", type=int, default=1)
    ap.add_argument("--wpf", type=int, default=20)
    ap.add_argument("--wpp", default="")
    ap.add_argument("--b0", type=int, default=8)
    ap.add_argument("--b1", type=int, default=4)
    opt = ap.parse_args()
    for k in ("wld", "xw", "wpp"): setattr(opt, k, (" " + getattr(opt, k)) if getattr(opt, k) else "")
    txt = HDR + f"; @launch grid=(256,1,1) block=(256,1,1) lds={LDS1}\n"
    txt += '.amdgcn_target "amdgcn-amd-amdhsa--gfx950"\n.text\n' + gen(opt)
    txt += f""".section .rodata,"a"
.p2align 6
.amdhsa_kernel {KN}
  .amdhsa_next_free_vgpr 512
  .amdhsa_next_free_sgpr 102
  .amdhsa_accum_offset 256
  .amdhsa_group_segment_fixed_size 0
  .amdhsa_kernarg_size 64
  .amdhsa_user_sgpr_count 2
  .amdhsa_user_sgpr_kernarg_segment_ptr 1
  .amdhsa_system_sgpr_workgroup_id_x 1
.end_amdhsa_kernel
"""
    open(opt.o, "w").write(txt)
main()
```

```python
import sys, struct, argparse, os
from asmlib import *

def f32(x): return "0x%08x" % struct.unpack("<I", struct.pack("<f", x))[0]
KN = "standalone__mha_block_cached__near_ridge_kernel"
MF = "v_mfma_f32_16x16x32_bf16"
UNIT = 32768; NS = 5
WQ0 = UNIT; WQS = 16384; NWQ = 3
X0 = WQ0 + NWQ * WQS; XPS = 1088; XS = 24 * XPS; NX = 3
LDS1 = 163840
assert X0 + NX * XS <= LDS1
AG = 256
CSCALE = 1.4426950408889634 * (128 ** -0.5)
THR = 10.0
STAMP_OFF = 0x10000000
PART = 0x2000000; FLAGS = 0x3000000; WSZ = 0x3100000
BIG = 10**9
NST = 12

def srd(A, d, lo, hi, size):
    A.I(f"s_mov_b32 s{d}, s{lo}\ns_mov_b32 s{d+1}, s{hi}\ns_mov_b32 s{d+2}, {size}\ns_mov_b32 s{d+3}, 0x20000")

class Sched:
    def __init__(self, A, cap=2):
        self.A = A; self.cap = cap; self.q = {"rd": [], "sa": [], "va": []}; self.pre = {}
    def add(self, qn, text, cost=1, e=0, d=BIG, tag=None): self.q[qn].append((cost, e, d, text, tag))
    def before(self, i, text): self.pre.setdefault(i, []).append(text)
    def emit(self, f):
        for t in f[3].split("\n"):
            if t.endswith(":"): self.A.label(t[:-1])
            else: self.A.I(t, tag=f[4])
    def flush(self, i):
        for qn in ("rd", "sa", "va"):
            q = self.q[qn]; last = -1
            for k, f in enumerate(q):
                if f[2] <= i: last = k
            for f in q[:last + 1]: self.emit(f)
            del q[:last + 1]
    def run(self, mf):
        for i, m in enumerate(mf):
            self.flush(i)
            for t in self.pre.get(i, []): self.A.I(t)
            self.A.I(m)
            b = self.cap - len(self.pre.get(i + 1, []))
            for qn in ("rd", "sa", "va"):
                q = self.q[qn]
                while q and q[0][1] <= i and q[0][0] <= b:
                    f = q.pop(0); self.emit(f); b -= f[0]
        self.flush(BIG)

def gen(opt):
    A = Asm(); I = A.I
    nt = " nt"
    vDe, vDo, vMx, vT = 1, 2, 6, 7
    AD = {0: (3, 4, 5), 1: (248, 249, 250), 2: (251, 252, 253)}
    vK, vVe, vVo = AD[0]
    vDw, vDx, vXa, vWa, vL16, vXb = 10, 11, 12, 13, 14, 52
    vDwo = 12
    NEG, S, KF, VF, Q, ACC = 16, 40, 88, 120, 152, 56
    O, L, ONES, PRE = AG, AG + 192, AG + 216, AG + 112
    Sb = lambda qb, kb: S + qb * 8 + kb * 4
    Qf = lambda qb, ks: Q + (qb * 4 + ks) * 4
    Of = lambda qb, db: O + (qb * 8 + db) * 4
    Af = lambda qb, db: ACC + (qb * 8 + db) * 4
    Kf = lambda kb, ks: KF + (kb * 4 + ks) * 4
    Vf = lambda db: VF + db * 4
    sW, sB, sHP, sHS, sQH, sH, sKQ, sNG, sJ, sID = 48, 49, 50, 51, 52, 53, 54, 55, 56, 57
    sKVm, sWm, sXm, sC, sThr, sWOm, sHb, sT = 58, 59, 60, 62, 61, 64, 66, 65
    sRet = 70
    t0, t1, t2, t3 = 72, 73, 74, 75
    XD, WD, KD, OD, WOD, OUTD, DBD = "s[20:23]", "s[24:27]", "s[28:31]", "s[32:35]", "s[36:39]", "s[40:43]", "s[44:47]"
    SST = 76
    def stamp(i):
        if opt.stamps: I(f"s_memrealtime s[{SST+2*i}:{SST+2*i+1}]\ns_memtime s[100:101]\ns_waitcnt lgkmcnt(0)\ns_mov_b32 s{SST+2*i+1}, s100")
    A.raw(f".globl {KN}\n.p2align 8\n.type {KN},@function\n{KN}:")
    I("s_cmp_ge_u32 s2, 256\ns_cbranch_scc1 L_end")
    stamp(0)
    I("s_load_dwordx16 s[4:19], s[0:1], 0")
    if opt.cpf:
        I("s_getpc_b64 s[36:37]")
        A.label("L_pc")
        I("s_mov_b32 s38, L_last-L_pc\ns_mov_b32 s39, 0x20000")
        I(f"s_lshr_b32 s{t0}, s2, 3\ns_and_b32 s{t0}, s{t0}, 15\ns_lshl_b32 s{t0}, s{t0}, 7")
        I(f"v_lshrrev_b32 v9, 2, v0\nv_lshlrev_b32 v9, 11, v9")
        I(f"buffer_load_dword v8, v9, s[36:39], s{t0} offen", tag="cpf")
    I(f"v_lshrrev_b32 v{vT}, 6, v0\nv_and_b32 v0, 63, v0")
    I(f"v_readfirstlane_b32 s{sW}, v{vT}")
    I(f"s_and_b32 s{t0}, s2, 7\ns_lshr_b32 s{t1}, s2, 3")
    I(f"s_and_b32 s{sB}, s{t0}, 1\ns_lshl_b32 s{sB}, s{sB}, 3\ns_and_b32 s{t2}, s{t1}, 7\ns_add_u32 s{sB}, s{sB}, s{t2}")
    I(f"s_lshr_b32 s{sKQ}, s{t0}, 1\ns_lshr_b32 s{sNG}, s{t1}, 3\ns_lshl_b32 s{sHP}, s{sKQ}, 2\ns_add_u32 s{sHP}, s{sHP}, s{sNG}")
    I(f"s_lshr_b32 s{sHS}, s{sW}, 1\ns_and_b32 s{sQH}, s{sW}, 1")
    I(f"s_lshl_b32 s{sH}, s{sHP}, 1\ns_add_u32 s{sH}, s{sH}, s{sHS}")
    g, r, c, tt = 16, 17, 18, 19
    I(f"v_lshrrev_b32 v{g}, 4, v0\nv_bfe_u32 v{r}, v0, 2, 2\nv_and_b32 v{c}, 3, v0\nv_lshlrev_b32 v{vL16}, 4, v0")
    I(f"v_xor_b32 v{vDx}, v{c}, v{g}\nv_and_b32 v{tt}, 4, v0\nv_or_b32 v{vDx}, v{vDx}, v{tt}\nv_lshlrev_b32 v{vDx}, 4, v{vDx}")
    I(f"v_lshrrev_b32 v{tt}, 3, v0\nv_mul_u32_u24 v{tt}, 1152, v{tt}\nv_add_u32 v{vDx}, v{vDx}, v{tt}")
    I(f"s_mul_i32 s{t0}, s{sW}, {48*1152}\ns_mul_i32 s{t1}, s{sB}, 221184\ns_add_u32 s{t0}, s{t0}, s{t1}")
    I(f"v_add_u32 v{vDx}, s{t0}, v{vDx}")
    I(f"s_mul_i32 s{sXm}, s{sW}, {6*XPS}\ns_add_u32 s{sXm}, s{sXm}, {X0}")
    I(f"v_lshlrev_b32 v{vDe}, 4, v{c}\nv_lshl_add_u32 v{vDe}, v{g}, 6, v{vDe}")
    I(f"v_lshl_add_u32 v{vDw}, v{r}, 13, v{vDe}")
    I(f"s_lshl_b32 s{t0}, s{sQH}, 15\ns_lshl_b32 s{t1}, s{sH}, 8\ns_add_u32 s{t0}, s{t0}, s{t1}")
    I(f"v_add_u32 v{vDw}, s{t0}, v{vDw}")
    I(f"s_lshl_b32 s{sWm}, s{sW}, 12\ns_add_u32 s{sWm}, s{sWm}, {WQ0}")
    I(f"v_lshl_add_u32 v{vDe}, v{r}, 8, v{vDe}\nv_xor_b32 v{vDo}, 32, v{vDe}")
    I(f"s_lshl_b32 s{sKVm}, s{sW}, 13")
    I("s_waitcnt lgkmcnt(0)")
    srd(A, 20, 4, 5, 3538944)
    srd(A, 24, 10, 11, 4718592)
    def dma_x(j, ps=range(6)):
        return [(f"s_add_u32 m0, s{sXm}, {(j % NX) * XS + p * XPS}\ns_mov_b32 s{t0}, {j * 128 + p * 8 * 1152}\nbuffer_load_dwordx4 v{vDx}, {XD}, s{t0} offen{opt.xw} lds", ("x", j)) for p in ps]
    def dma_w(st):
        return [(f"s_add_u32 m0, s{sWm}, {(st % NWQ) * WQS + p * 1024}\ns_mov_b32 s{t0}, {(st * 32 + p * 8) * 8192}\nbuffer_load_dwordx4 v{vDw}, {WD}, s{t0} offen{opt.xw} lds", ("w", st)) for p in range(4)]
    def dma_kv(u):
        return [(f"s_add_u32 m0, s{sKVm}, {(u % NS) * UNIT + (p >> 2) * 4096}\ns_mov_b32 s{t0}, {u * 8192 + (p >> 2) * 4096}\nbuffer_load_dwordx4 v{vDo if p & 1 else vDe}, {KD}, s{t0} offen offset:{1024*(p&3)}{nt} lds", ("kv", u)) for p in range(8)]
    def pre(u, p):
        if u == NS: return AG + 220 + 4 * p
        return (20 + 4 * p) if u == 1 else PRE + ((u - 2) * 8 + p) * 4
    def ld_kv(u):
        return [(f"s_mov_b32 s{t0}, {u * 8192 + (p >> 2) * 4096}\nbuffer_load_dwordx4 {R(pre(u, p), 4)}, v{vDo if p & 1 else vDe}, {KD}, s{t0} offen offset:{1024*(p&3)}{nt}", ("kvr", u)) for p in range(8)]
    def issue(L_):
        for t, tag in L_: I(t, tag=tag)
    issue(dma_x(0) + dma_w(0) + dma_w(1))
    I(f"s_bitcmp1_b32 s{sW}, 0\ns_cselect_b32 s28, s8, s6\ns_cselect_b32 s29, s9, s7")
    I(f"s_lshl_b32 s{t0}, s{sB}, 5\ns_add_u32 s{t0}, s{t0}, s{sH}\ns_lshl_b32 s{t0}, s{t0}, 18")
    I(f"s_add_u32 s28, s28, s{t0}\ns_addc_u32 s29, s29, 0\ns_mov_b32 s30, 262144\ns_mov_b32 s31, 0x20000")
    srd(A, 32, 18, 19, WSZ)
    srd(A, 36, 12, 13, 4718592)
    srd(A, 40, 14, 15, 3538944)
    srd(A, 44, 16, 17, 256)
    I(f"s_lshl_b32 s{sJ}, s{sQH}, 1\ns_add_u32 s{sJ}, s{sJ}, s{sHS}\ns_lshl_b32 s{sID}, s{sB}, 4\ns_add_u32 s{sID}, s{sID}, s{sHP}")
    def lane0(dst):
        I(f"v_or_b32 v{dst}, s{sW}, v0\nv_min_u32 v{dst}, 1, v{dst}\nv_lshlrev_b32 v{dst}, 30, v{dst}")
    lane0(53)
    I(f"v_mov_b32 v54, 0\nv_mov_b32 v55, 0\ns_lshl_b32 s{t0}, s{sID}, 7\ns_add_u32 s{t0}, s{t0}, {FLAGS}")
    I(f"buffer_store_dwordx2 v[54:55], v53, {OD}, s{t0} offen sc1", tag="clr")
    I(f"v_and_b32 v{tt}, 1, v{r}\nv_lshlrev_b32 v{tt}, 1, v{tt}\nv_xor_b32 v{tt}, v{tt}, v{g}\nv_lshlrev_b32 v{vK}, 4, v{tt}")
    I(f"v_lshl_add_u32 v{vK}, v{c}, 6, v{vK}\nv_lshl_add_u32 v{vK}, v{r}, 10, v{vK}")
    I(f"s_lshl_b32 s{t0}, s{sHS}, 14")
    I(f"v_add_u32 v{vK}, s{t0}, v{vK}")
    I(f"v_lshlrev_b32 v{vWa}, 10, v{g}\nv_lshl_add_u32 v{vWa}, v{r}, 6, v{vWa}")
    I(f"v_lshl_add_u32 v{vVe}, v{c}, 3, v{vWa}\nv_and_b32 v{tt}, 1, v{g}\nv_lshl_add_u32 v{vVe}, v{tt}, 5, v{vVe}")
    I(f"s_add_u32 s{t0}, s{t0}, 8192")
    I(f"v_add_u32 v{vVe}, s{t0}, v{vVe}\nv_xor_b32 v{vVo}, 32, v{vVe}")
    I(f"s_lshl_b32 s{t1}, s{sHS}, 13\ns_add_u32 s{t1}, s{t1}, {WQ0}")
    I(f"v_lshl_add_u32 v{vWa}, v{c}, 4, v{vWa}\nv_add_u32 v{vWa}, s{t1}, v{vWa}")
    I(f"v_bfe_u32 v{vXa}, v0, 1, 2\nv_xor_b32 v{vXa}, v{vXa}, v{g}\nv_lshlrev_b32 v{vXa}, 4, v{vXa}")
    I(f"v_and_b32 v{tt}, 7, v0\nv_lshl_add_u32 v{vXa}, v{tt}, 7, v{vXa}")
    I(f"v_bfe_u32 v{tt}, v0, 3, 1\nv_mul_u32_u24 v{tt}, {XPS}, v{tt}\nv_add_u32 v{vXa}, v{vXa}, v{tt}")
    I(f"s_mul_i32 s{t0}, s{sJ}, {6*XPS}\ns_add_u32 s{t0}, s{t0}, {X0}\ns_xor_b32 s{t1}, s{sJ}, 1\ns_mul_i32 s{t1}, s{t1}, {6*XPS}\ns_add_u32 s{t1}, s{t1}, {X0}")
    I(f"v_add_u32 v{vXb}, s{t1}, v{vXa}\nv_add_u32 v{vXa}, s{t0}, v{vXa}")
    I(f"v_mov_b32 v{vT}, 0x3f803f80")
    for k in range(4): I(f"v_accvgpr_write_b32 {R(ONES+k)}, v{vT}")
    I(f"s_mov_b32 s{sC}, {f32(CSCALE)}\ns_mov_b32 s{sC+1}, {f32(CSCALE)}\ns_mov_b32 s{sThr}, {f32(THR)}")
    if not opt.hb: issue(dma_x(1, range(3)) + dma_w(2) + dma_x(1, range(3, 6)))
    for k in range(3): I(f"v_add_u32 v{AD[1][k]}, 0x10000, v{AD[0][k]}\nv_add_u32 v{AD[2][k]}, 0x20000, v{AD[0][k]}")
    I(f"v_add_u32 v254, s{sKVm}, v{vL16}\nv_add_u32 v255, 0x10000, v254\nv_add_u32 v15, 0x20000, v254")
    for d in range(4):
        I(f"s_add_u32 s{t0}, s{sNG}, {d}\ns_and_b32 s{t0}, s{t0}, 3\ns_lshl_b32 s{t0}, s{t0}, 1\ns_lshl_b32 s{t1}, s{sKQ}, 3\ns_add_u32 s{t0}, s{t0}, s{t1}\ns_add_u32 s{t0}, s{t0}, s{sHS}")
        I(f"s_lshl_b32 s{t0}, s{t0}, 3\ns_add_u32 s{t0}, s{t0}, s{sQH}\ns_mul_i32 s{sHb+d}, s{t0}, {16*1152}")
    I(f"s_mul_i32 s{sWOm}, s{sHS}, 12288\ns_lshl_b32 s{t0}, s{sQH}, 11\ns_add_u32 s{sWOm}, s{sWOm}, s{t0}")
    if opt.cp:
        I(f"s_and_b32 s{t0}, s2, 1\ns_lshl_b32 s{t0}, s{t0}, 7\ns_lshr_b32 s{t1}, s2, 3\ns_lshl_b32 s{t1}, s{t1}, 2\ns_add_u32 s{t1}, s{t1}, s{sW}\ns_add_u32 s{t0}, s{t0}, s{t1}\ns_mul_i32 s{t0}, s{t0}, {12*1152}")
        I(f"v_min_u32 v6, 11, v0\nv_mul_u32_u24 v6, 1152, v6\nv_add_u32 v6, s{t0}, v6")
        I(f"s_lshr_b32 s{t0}, s{t1}, 1\ns_lshl_b32 s{t0}, s{t0}, 13\ns_and_b32 s{t1}, s{t1}, 1\ns_lshl_b32 s{t1}, s{t1}, 10\ns_add_u32 s{t0}, s{t0}, s{t1}\ns_lshl_b32 s{t1}, s{sKQ}, 11\ns_add_u32 s{t0}, s{t0}, s{t1}")
        I(f"v_and_b32 v9, 7, v0\nv_lshlrev_b32 v9, 7, v9\nv_add_u32 v9, s{t0}, v9")
    def cpx(j): return [(f"buffer_load_dword v8, v6, {XD}, 0 offen offset:{128*j}{opt.cpp}", "cp")] if j < 9 else []
    def cpw(j): return [(f"s_mov_b32 s{t0}, {j*64*8192}\nbuffer_load_dword v8, v9, {WD}, s{t0} offen{opt.cpp}", "cp")] if j < 9 else []
    if opt.hb:
        for j in range(1, opt.cp): issue(cpw(j) + cpx(j))
        issue(dma_w(2) + dma_x(1))
    elif opt.cp:
        A.auto_vm = False
        for j in range(2, opt.cp): issue(cpw(j) + (cpx(j + 1) if j + 1 >= 3 else []))
        A.auto_vm = True
    def wpf_addr(dst):
        I(f"s_lshr_b32 s{t0}, s2, 3\ns_lshl_b32 s{t1}, s{sKQ}, 5\ns_add_u32 s{t0}, s{t0}, s{t1}\ns_lshl_b32 s{t0}, s{t0}, 2\ns_add_u32 s{t0}, s{t0}, s{sW}\ns_mul_i32 s{t0}, s{t0}, 9216")
        I(f"v_and_b32 v{dst}, 15, v0\nv_lshlrev_b32 v{dst}, 7, v{dst}\nv_add_u32 v{dst}, s{t0}, v{dst}")
    def wpf_(k, a_=7, d_=8):
        return (f"s_mov_b32 s{t3}, {min(k * 2048, 7168)}\nbuffer_load_dword v{d_}, v{a_}, {WOD}, s{t3} offen{opt.wpp}", "cp")
    if opt.wpf < 0: wpf_addr(7)
    WA = {0: 254, 1: 255, 2: 15}
    def wr_kv(u):
        sl = u % NS
        return [f"ds_write_b128 v{WA[sl >> 1]}, {R(pre(u, p), 4)} offset:{(sl & 1) * UNIT + p * 1024}" for p in range(8)]
    Wf = lambda st, db: AG + (st % 2) * 56 + db * 4
    Xf = lambda st, qb: AG + (st % 2) * 56 + 32 + qb * 4
    def reads(st):
        wo_ = (st % NWQ) * WQS; xo_ = ((st >> 1) % NX) * XS + (st & 1) * 64
        R_ = [f"ds_read_b128 {R(Xf(st,qb),4)}, v{vXa if qb < 3 else vXb} offset:{xo_ + (qb%3)*2*XPS}" for qb in range(6)]
        for db in range(8):
            for e in range(2):
                R_.append(f"ds_read_b64_tr_b16 {R(Wf(st,db)+2*e,2)}, v{vWa} offset:{wo_ + e*4096 + (db>>1)*256 + (db&1)*8}")
        return R_
    A.wait_vm_tag(("w", 0), ("x", 0))
    I("s_barrier")
    stamp(1)
    for x in reads(0): I(x)
    kvq = dma_kv(0)
    for u in range(1, opt.rpf + 1): kvq += ld_kv(u)
    def qpack(qb):
        L_ = []
        for db in range(7, -1, -1):
            o = Af(qb, db); d = Qf(qb, db >> 1) + 2 * (db & 1)
            L_.append(f"v_pk_mul_f32 v[{o}:{o+1}], v[{o}:{o+1}], s[{sC}:{sC+1}]\nv_pk_mul_f32 v[{o+2}:{o+3}], v[{o+2}:{o+3}], s[{sC}:{sC+1}]")
            L_.append(f"v_cvt_pk_bf16_f32 v{d+1}, v{o+2}, v{o+3}\nv_cvt_pk_bf16_f32 v{d}, v{o}, v{o+1}")
        return L_
    for st in range(18):
        A.comment(f"qproj step {st}")
        if opt.tl: I("s_memrealtime s[100:101]")
        I("s_waitcnt lgkmcnt(0)")
        if opt.tl: I(f"v_writelane_b32 v55, s100, {32+st}")
        if st + 1 < 18: A.wait_vm_tag(("w", st + 1), ("x", (st + 1) >> 1))
        I("s_barrier")
        if not opt.hb:
            D = []
            if st + 3 < 18: D += dma_w(st + 3)
            if st == 0: D += dma_x(2)
            elif st % 2 == 1 and (st - 1) // 2 + 3 < 9: D += dma_x((st - 1) // 2 + 3, range(3))
            elif st % 2 == 0 and (st - 2) // 2 + 3 < 9: D += dma_x((st - 2) // 2 + 3, range(3, 6))
            if opt.cp: D = (cpw(st // 2 + opt.cp) if st % 2 == 0 else cpx(st // 2 + opt.cp + 1)) + D
            if st == 15 and opt.rpf < 3 <= opt.hdu: kvq += dma_kv(3)
            if st < 17:
                n = opt.kvw[st]
                D += kvq[:n]; kvq = kvq[n:]
                if opt.wpf < 0 and -opt.wpf <= st < -opt.wpf + 5: D = [wpf_(st + opt.wpf)] + D
        else:
            if st == 15 and opt.rpf < 3 <= opt.hdu: kvq += dma_kv(3)
            far = []; near = []
            if st % 2 == 0: far += cpw(st // 2 + opt.cp) + cpx(st // 2 + opt.cp)
            if opt.wpf < 0 and st % 2 == 0 and 0 <= (st + opt.wpf) // 2 < 5 and st >= -opt.wpf: far.append(wpf_((st + opt.wpf) // 2))
            if st < 17:
                n = opt.kvw[st]; far += kvq[:n]; kvq = kvq[n:]
            if st + 3 < 18: near += dma_w(st + 3)
            if st % 2 == 1 and (st + 3) // 2 < 9: near += dma_x((st + 3) // 2)
            D = []
            spread = (st >= 15)
            for k, x in enumerate(far): D.append((x, (k * 44) // len(far) if spread else k))
            for k, x in enumerate(near): D.append((x, (opt.hn0 + (k * (46 - opt.hn0)) // len(near)) if st % 2 == 0 else opt.hn1 + (k * (44 - opt.hn1)) // len(near)))
        SC = Sched(A)
        if st < 17:
            R_ = reads(st + 1)
            if opt.hb:
                for k in range(0, 22, 2): SC.add("rd", R_[k] + "\n" + R_[k + 1], cost=2, e=(9 + k if st % 2 == 0 else 2 * k))
                for (t, tag), e_ in D: SC.add("sa", t, cost=2, e=e_, tag=tag)
            else:
                for k in range(0, 22, 2): SC.add("rd", R_[k] + "\n" + R_[k + 1], cost=2, e=2 * k)
                for k, (t, tag) in enumerate(D): SC.add("sa", t, cost=2, e=1 + (k * 44) // len(D), tag=tag)
            mf = [f"{MF} {v(Af(qb,db),4)}, {R(Wf(st,db),4)}, {R(Xf(st,qb),4)}, " + ("0" if st == 0 else v(Af(qb, db), 4)) for db in range(8) for qb in range(6)]
        else:
            D = kvq
            for u in range(opt.rpf + 1, opt.hdu + 1):
                if u != 3: D = D + dma_kv(u)
            if opt.xu == 1: D = D + ld_kv(NS)
            W_ = []
            for u in range(1, opt.rpf + 1): W_ += wr_kv(u)
            P_ = []
            for qb in range(5, -1, -1): P_ += [(t, (5 - qb) * 8 + 11) for t in qpack(qb)]
            nW = min(len(W_), 20)
            for k in range(0, nW, 2): SC.add("rd", W_[k] + "\n" + W_[k + 1], cost=2, e=k // 2)
            W_ = W_[nW:]
            for k, (t, e_) in enumerate(P_):
                SC.add("va", t, cost=2, e=e_)
                if W_ and k % 3 == 2: SC.add("va", W_.pop(0), cost=1, e=e_)
                if D and k % opt.dsp == 0:
                    t2_, tag = D.pop(0); SC.add("va", t2_, cost=2, e=e_, tag=tag)
            for t in W_: SC.add("va", t, cost=1)
            for t2_, tag in D: SC.add("va", t2_, cost=2, tag=tag)
            mf = [f"{MF} {v(Af(qb,db),4)}, {R(Wf(st,db),4)}, {R(Xf(st,qb),4)}, {v(Af(qb,db),4)}" for qb in range(5, -1, -1) for db in range(7, -1, -1)]
        SC.run(mf)
    I(f"v_bfe_u32 v{vDwo}, v0, 1, 2\nv_lshrrev_b32 v{vT}, 4, v0\nv_xor_b32 v{vDwo}, v{vDwo}, v{vT}\nv_lshlrev_b32 v{vDwo}, 5, v{vDwo}")
    I(f"v_and_b32 v{vT}, 1, v0\nv_lshl_add_u32 v{vDwo}, v{vT}, 4, v{vDwo}")
    I(f"v_lshrrev_b32 v{vT}, 3, v0\nv_mul_u32_u24 v{vT}, 1152, v{vT}\nv_add_u32 v{vDwo}, v{vDwo}, v{vT}")
    I(f"s_lshl_b32 s{t0}, s{sNG}, 8")
    I(f"v_add_u32 v{vDwo}, s{t0}, v{vDwo}")
    I("s_waitcnt lgkmcnt(0)")
    stamp(2)
    if opt.tl: I(f"v_mov_b32 v10, v55\ns_nop 1\nv_writelane_b32 v10, s{SST}, 63\nv_writelane_b32 v10, s{SST+4}, 50")
    def dma_wo(i, slot):
        L_ = []
        for rgl in range(2):
            for ln in range(3):
                t = f"s_add_u32 m0, s{sWOm}, {slot * UNIT + (ln * 4 + rgl) * 1024 - 128 * ln}\n"
                if ln == 0: t += f"s_add_u32 s{sT}, s{sHb + (i >> 2)}, {((i & 3) * 32 + rgl * 8) * 1152}\n"
                L_.append((t + f"buffer_load_dwordx4 v{vDwo}, {WOD}, s{sT} offen offset:{128*ln}{opt.wld} lds", ("wo", i)))
        return L_
    done = set(range(0, max(opt.rpf, opt.hdu) + 1)) | ({NS} if opt.xu else set())
    units = [u for u in range(32) if u not in done]
    plan = {t: [] for t in range(32)}
    npc = 8 * len(units); ts = max(0.05, units[0] - 4 + 0.05); last = 0
    for k in range(npc):
        u = units[k // 8]; p = k % 8
        tau = max(ts + (opt.tend - ts) * k / npc, u - 4 + 0.05 + 0.02 * p, last + 0.02); last = tau
        t = f"buffer_load_dwordx4 v{vDo if p & 1 else vDe}, {KD}, s{sT} offen offset:{1024*(p&3)}{nt} lds"
        if p % 4 == 0: plan[int(tau)].append((tau - int(tau), f"s_add_u32 m0, s{sKVm}, {(u % NS) * UNIT + (p >> 2) * 4096}\ns_mov_b32 s{sT}, {u * 8192 + (p >> 2) * 4096}", None, 2))
        if opt.win: plan[int(tau)].append((tau - int(tau), f"s_waitcnt vmcnt({opt.win})\n" + t, ("kv", u), 2))
        else: plan[int(tau)].append((tau - int(tau), t, ("kv", u), 1))
    slot_of = {}
    W0 = []
    for i in range(4):
        slot_of[i] = (32 + i) % NS
        W0 += [(i, x) for x in dma_wo(i, slot_of[i])]
    for k, (i, (t, tag)) in enumerate(W0):
        tau = max(last + 0.02, opt.tend + (31.9 - opt.tend) * k / 24, 28 + i + 0.05); last = tau
        assert tau < 32
        plan[int(tau)].append((tau - int(tau), t, tag, 2))
    if opt.wpf > 0:
        wpf_addr(11)
        for k in range(5): plan[opt.wpf + k * opt.wps].append((0.97, wpf_(k, 11, 13)[0], "cp", 1))
    lane0(13 if opt.wpf <= 0 else 10) if not opt.tl else lane0(13)
    A.wait_vm_tag("clr")
    I(f"v_mov_b32 v{vT}, 1\nbuffer_store_byte v{vT}, v{13 if (opt.wpf <= 0 or opt.tl) else 10}, {DBD}, s{sID} offen sc1", tag="clr2")
    if opt.xu == 2:
        plan[0] = [(0.05 + 0.11 * k, t, tag, 2) for k, (t, tag) in enumerate(ld_kv(NS))] + plan[0]
    sites = []
    def pv(qb, init):
        m = [f"{MF} {R(Of(qb,db),4)}, {v(Vf(db),4)}, {v(S+qb*8,4)}, " + ("0" if init else R(Of(qb, db), 4)) for db in range(8)]
        m.append(f"{MF} {R(L+4*qb,4)}, {R(ONES,4)}, {v(S+qb*8,4)}, " + ("0" if init else R(L + 4 * qb, 4)))
        return m
    def qk(qb, init):
        m = []
        for kb in range(2):
            for ks in range(4):
                cc = ("0" if init else v(NEG + 4 * qb, 4)) if ks == 0 else v(Sb(qb, kb), 4)
                m.append(f"{MF} {v(Sb(qb,kb),4)}, {v(Kf(kb,ks),4)}, {v(Qf(qb,ks),4)}, {cc}")
        return m
    def E(qb):
        b = S + qb * 8; L_ = []
        for h in range(2):
            for k in range(4): L_.append(f"v_exp_f32 v{b+4*h+k}, v{b+4*h+k}")
            L_.append(f"v_cvt_pk_bf16_f32 v{b+2*h}, v{b+4*h}, v{b+4*h+1}\nv_cvt_pk_bf16_f32 v{b+2*h+1}, v{b+4*h+2}, v{b+4*h+3}")
        return L_
    def chk(qa, init):
        m = vMx; t_ = vT; L_ = []
        if init:
            for qb in (qa, qa + 1):
                b = S + qb * 8
                L_.append(f"v_max3_f32 v{m}, v{b}, v{b+1}, v{b+2}\nv_max3_f32 v{m}, v{m}, v{b+3}, v{b+4}")
                L_.append(f"v_max3_f32 v{m}, v{m}, v{b+5}, v{b+6}\nv_max_f32 v{m}, v{m}, v{b+7}")
                L_.append(f"v_mov_b32 v{t_}, v{m}"); L_.append(f"v_permlane32_swap_b32 v{t_}, v{m}\nv_max_f32 v{m}, v{m}, v{t_}")
                L_.append(f"v_mov_b32 v{t_}, v{m}"); L_.append(f"v_permlane16_swap_b32 v{t_}, v{m}\nv_max_f32 v{m}, v{m}, v{t_}")
                for k in range(0, 8, 2): L_.append(f"v_sub_f32 v{b+k}, v{b+k}, v{m}\nv_sub_f32 v{b+k+1}, v{b+k+1}, v{m}")
                for k in range(0, 4, 2): L_.append(f"v_sub_f32 v{NEG+4*qb+k}, 0, v{m}\nv_sub_f32 v{NEG+4*qb+k+1}, 0, v{m}")
            return L_
        b = S + qa * 8; m2 = vT + 2
        L_.append(f"v_max3_f32 v{m}, v{b}, v{b+1}, v{b+2}\nv_max3_f32 v{m2}, v{b+8}, v{b+9}, v{b+10}")
        L_.append(f"v_max3_f32 v{m}, v{m}, v{b+3}, v{b+4}\nv_max3_f32 v{m2}, v{m2}, v{b+11}, v{b+12}")
        L_.append(f"v_max3_f32 v{m}, v{m}, v{b+5}, v{b+6}\nv_max3_f32 v{m2}, v{m2}, v{b+13}, v{b+14}")
        L_.append(f"v_max3_f32 v{m}, v{m}, v{b+7}, v{b+15}\nv_max_f32 v{m}, v{m}, v{m2}")
        L_.append(f"v_cmp_lt_f32 vcc, s{sThr}, v{m}")
        return L_
    def body(t):
        cur = t < 32; prev = t > 0; icur = t == 0; iprev = t == 1
        sl = t % NS; so = (sl & 1) * UNIT; aK, aVe, aVo = AD[sl >> 1]
        if cur: A.wait_vm_tag(("kv", t))
        I("s_barrier")
        order = [("qk", 5, 1), ("pv", 2, 1), ("qk", 0, 0), ("pv", 3, 1), ("qk", 1, 0), ("pv", 4, 1), ("qk", 2, 0), ("pv", 5, 1), ("qk", 3, 0), ("pv", 0, 0), ("qk", 4, 0), ("pv", 1, 0)]
        mf = []; st_ = {}; en = {}
        for kind, qb, pr in order:
            if (pr and not prev) or (not pr and not cur): continue
            ini = iprev if pr else icur
            st_[(kind, qb, pr)] = len(mf)
            mf += qk(qb, ini) if kind == "qk" else pv(qb, ini)
            en[(kind, qb, pr)] = len(mf) - 1
        n = len(mf)
        SC = Sched(A)
        if cur:
            k0 = 0 if prev else -100
            for i in range(0, 8, 2):
                tx = "\n".join(f"ds_read_b128 {v(Kf(j>>2,j&3),4)}, v{aK} offset:{so + (j>>2)*4096 + (j&3)*256}" for j in (i, i + 1))
                SC.add("rd", tx, cost=2, e=k0 + i + 1, d=st_[("qk", 0, 0)])
            extra = wr_kv(NS) if (t == 1 and opt.xu) else []
            for k in range(0, len(extra), 2): SC.add("rd", extra[k] + "\n" + extra[k + 1], cost=2, e=20 + 2 * k)
            v0_ = st_[("pv", 5, 1)] if prev else st_[("qk", 1, 0)]
            for db in range(8):
                tx = "\n".join(f"ds_read_b64_tr_b16 {v(Vf(db)+2*e,2)}, v{aVo if db & 1 else aVe} offset:{so + e*4096 + (db>>1)*256}" for e in range(2))
                SC.add("rd", tx, cost=2, e=v0_ + db, d=st_[("pv", 0, 0)])
            if prev and opt.tl == 1:
                SC.before(st_[("qk", 0, 0)] - 4, "s_memrealtime s[100:101]")
                SC.before(st_[("qk", 0, 0)] + 1, f"v_writelane_b32 v10, s100, {t-1}")
            if prev: SC.before(st_[("qk", 0, 0)], "s_waitcnt lgkmcnt(0)")
            SC.before(st_[("pv", 0, 0)], "s_waitcnt lgkmcnt(0)")
            for fr, tx, tag, co in plan[t]: SC.add("sa", tx, cost=co, e=int(fr * n), tag=tag)
        else:
            SC.add("sa", f"s_lshl_b32 s{t0}, s{sB}, 4\nv_mov_b32 v{vDe}, 0", cost=2)
            SC.add("sa", f"buffer_load_dwordx4 v[248:251], v{vDe}, {DBD}, s{t0} offen sc1", tag="dbg")
        seq = []
        def addE(qb, d): seq.extend((x, 0, d) for x in E(qb))
        def addchk(qa, pr, d):
            ini = iprev if pr else icur
            e = en[("qk", qa + 1, pr)] + opt.lat
            C_ = [(x, e, d) for x in chk(qa, ini)]
            if ini: seq.extend(C_); return
            tail = seq[len(seq) - opt.brd:] if len(seq) >= opt.brd else []
            del seq[len(seq) - len(tail):]
            dd = min([d] + [x[2] for x in tail])
            seq.extend((x, e_, dd) for x, e_, _ in C_)
            seq.extend(tail)
            sites.append((qa, t))
            seq.append((f"s_cbranch_vccnz L_stub{qa}_{t}\nL_back{qa}_{t}:", e, d))
        if prev:
            addE(3, st_[("pv", 3, 1)])
            addchk(4, 1, st_[("pv", 4, 1)]); addE(4, st_[("pv", 4, 1)]); addE(5, st_[("pv", 5, 1)])
        if cur:
            addchk(0, 0, st_[("pv", 0, 0)]); addE(0, st_[("pv", 0, 0)]); addE(1, st_[("pv", 1, 0)])
            addchk(2, 0, BIG); addE(2, BIG)
        for x, e, d in seq: SC.add("va", x, cost=(1 if "L_back" in x else (2 if ("\n" in x or "v_exp" in x) else 1)), e=e, d=d)
        SC.run(mf)
        if A.lg: I("s_waitcnt lgkmcnt(0)")
    for t in range(33): body(t)
    stamp(3)
    GA = 16
    acc = lambda q3, nb: GA + (q3 * 9 + nb) * 4
    AF = AG + 220
    RC, TMP = 124, 136
    aB, aC = (1, 2, 3, 4), (252, 253, 254, 255)
    vE0, vE1 = 5, 6
    for qb in range(6): I(f"v_accvgpr_read_b32 v{RC+qb*2}, {R(L+4*qb)}")
    for qb in range(6): I(f"v_rcp_f32 v{RC+qb*2}, v{RC+qb*2}")
    I(f"s_lshl_b32 s{t0}, s{sB}, 5\ns_add_u32 s{t0}, s{t0}, s{sH}\ns_lshl_b32 s{t0}, s{t0}, 2\ns_xor_b32 s{t1}, s{sJ}, 1\ns_add_u32 s{t1}, s{t1}, s{t0}\ns_add_u32 s{t0}, s{t0}, s{sJ}")
    I(f"s_mul_i32 s{t0}, s{t0}, 12288\ns_mul_i32 s{t1}, s{t1}, 12288")
    for qb in range(6): I(f"v_mov_b32 v{RC+qb*2+1}, v{RC+qb*2}")
    XSL = 31 % NS
    lo2, lo3 = slot_of[0], slot_of[1]
    def exaddr(d0, d1, sw):
        I(f"s_lshl_b32 s{t2}, s{sw}, 13\ns_add_u32 s{t2}, s{t2}, {XSL*UNIT}")
        I(f"v_add_u32 v{d0}, s{t2}, v{vL16}")
        I(f"s_lshr_b32 s{t2}, s{sw}, 1\ns_mul_i32 s{t2}, s{t2}, {(lo3-lo2)*UNIT}\ns_and_b32 s{t3}, s{sw}, 1\ns_lshl_b32 s{t3}, s{t3}, 12\ns_add_u32 s{t2}, s{t2}, s{t3}\ns_add_u32 s{t2}, s{t2}, {lo2*UNIT+24576}")
        I(f"v_add_u32 v{d1}, s{t2}, v{vL16}")
    exaddr(vE0, vE1, sW)
    k = 0
    for half in (1, 0):
        for ks in range(4):
            for q3 in range(3):
                qb = 3 * half + q3; d = Qf(qb, ks); tmp = TMP + (k % 2) * 8; k += 1
                f = ks * 3 + q3
                for kk in range(8): I(f"v_accvgpr_read_b32 v{tmp+kk}, {R(Of(qb, 2*ks) + kk)}")
                for kk in range(0, 8, 2): I(f"v_pk_mul_f32 v[{tmp+kk}:{tmp+kk+1}], v[{tmp+kk}:{tmp+kk+1}], v[{RC+qb*2}:{RC+qb*2+1}]")
                for kk in range(4): I(f"v_cvt_pk_bf16_f32 v{d+kk}, v{tmp+2*kk}, v{tmp+2*kk+1}")
                I(f"buffer_store_dwordx4 {v(d,4)}, v{vL16}, {OD}, s{t0+half} offen offset:{(f&3)*1024} sc1", tag="ost")
                if f % 4 == 3: I(f"s_add_u32 s{t0+half}, s{t0+half}, 4096")
                if half: I(f"ds_write_b128 v{vE0 if f < 8 else vE1}, {v(d,4)} offset:{(f%8)*1024}")
    stamp(4)
    I(f"v_lshrrev_b32 v{vT}, 2, v0\nv_lshlrev_b32 v{vT}, 7, v{vT}\nv_and_b32 v{vT+1}, 3, v0\nv_lshl_add_u32 v{vT}, v{vT+1}, 3, v{vT}\nv_bfe_u32 v{vT+1}, v0, 3, 2")
    for kk in range(4):
        I(f"s_add_u32 s{t2}, s{sNG}, {kk}\ns_and_b32 s{t3}, s{t2}, 3\ns_lshr_b32 s{t2}, s{t2}, 2\ns_lshl_b32 s{t2}, s{t2}, 12")
        I(f"v_xor_b32 v{aB[kk]}, s{t3}, v{vT+1}\nv_lshl_add_u32 v{aB[kk]}, v{aB[kk]}, 5, v{vT}\nv_add_u32 v{aB[kk]}, s{t2}, v{aB[kk]}")
    sOwn, sOth = sXm, sWm
    I(f"s_mul_i32 s{sOwn}, s{sHS}, 12288\ns_sub_u32 s{sOth}, 12288, s{sOwn}")
    I(f"s_xor_b32 s{sKVm}, s{sW}, 2")
    exaddr(vT + 1, vT + 2, sKVm)
    H = [(i, w_) for i in range(16) for w_ in (0, 1)]
    def Bf(i, w_, q3):
        d = i >> 2; ks = i & 3
        if d in (0, 3): return Qf(3 * w_ + q3, ks)
        return AG + (d - 1) * 96 + ((3 * w_ + q3) * 4 + ks) * 4
    def setaddr(n):
        i, w_ = H[n]
        return [f"s_add_u32 s{t2}, s{sOth if w_ else sOwn}, {slot_of[i]*UNIT}\nv_add_u32 v{aC[0]}, s{t2}, v{aB[0]}",
                f"v_add_u32 v{aC[1]}, s{t2}, v{aB[1]}\nv_add_u32 v{aC[2]}, s{t2}, v{aB[2]}", f"v_add_u32 v{aC[3]}, s{t2}, v{aB[3]}"]
    def rda(nb): return "\n".join(f"ds_read_b64_tr_b16 {R(AF+nb*4+2*e,2)}, v{aC[nb&3]} offset:{(nb>>2)*4096 + e*2048}" for e in range(2))
    def ldB(d):
        L_ = []
        pre_ = f"s_add_u32 s{t0}, s{sNG}, {d}\ns_and_b32 s{t0}, s{t0}, 3\ns_lshl_b32 s{t0}, s{t0}, 1\ns_lshl_b32 s{t1}, s{sKQ}, 3\ns_add_u32 s{t0}, s{t0}, s{t1}\ns_add_u32 s{t0}, s{t0}, s{sHS}\n"
        pre_ += f"s_lshl_b32 s{t1}, s{sB}, 5\ns_add_u32 s{t0}, s{t0}, s{t1}\ns_xor_b32 s{t1}, s{t0}, 1\ns_lshl_b32 s{t0}, s{t0}, 2\ns_lshl_b32 s{t1}, s{t1}, 2\ns_add_u32 s{t0}, s{t0}, s{sJ}\ns_add_u32 s{t1}, s{t1}, s{sJ}\n"
        pre_ += f"s_mul_i32 s{t0}, s{t0}, 12288\ns_mul_i32 s{t1}, s{t1}, 12288\n"
        for ks in range(4):
            for w_ in range(2):
                for q3 in range(3):
                    tx = f"buffer_load_dwordx4 {R(Bf(4*d+ks, w_, q3),4)}, v{vL16}, {OD}, s{t0+w_} offen offset:{q3*1024}{opt.bld}"
                    if q3 == 2: tx += f"\ns_add_u32 s{t0+w_}, s{t0+w_}, 3072"
                    L_.append(pre_ + tx); pre_ = ""
        return L_
    def spin(name, load, cmpv):
        I(f"s_mov_b32 s{t3}, 0x200000")
        A.label(f"L_spin{name}")
        I(load); I("s_waitcnt vmcnt(0)")
        I(cmpv)
        I(f"s_cmp_eq_u64 vcc, exec\ns_cbranch_scc1 L_go{name}")
        I(f"s_sleep 2\ns_sub_u32 s{t3}, s{t3}, 1\ns_cmp_lg_u32 s{t3}, 0\ns_cbranch_scc1 L_spin{name}")
        A.label(f"L_go{name}")
    I("v_and_b32 v248, v248, v249\nv_and_b32 v250, v250, v251\nv_and_b32 v248, v248, v250")
    I(f"v_cmp_eq_u32 vcc, 0x01010101, v248\ns_cmp_eq_u64 vcc, exec\ns_cbranch_scc1 L_goC")
    sv = (list(A.vm), list(A.lg))
    I(f"s_lshl_b32 s{t0}, s{sB}, 4\nv_mov_b32 v{TMP}, 0")
    spin("C", f"buffer_load_dwordx4 v[248:251], v{TMP}, {DBD}, s{t0} offen sc1", "v_and_b32 v248, v248, v249\nv_and_b32 v250, v250, v251\nv_and_b32 v248, v248, v250\nv_cmp_eq_u32 vcc, 0x01010101, v248")
    A.vm, A.lg = sv
    lane0(248)
    I(f"v_mov_b32 v249, 1\nv_and_b32 v250, 3, v0\nv_lshlrev_b32 v251, 9, v250\nv_lshlrev_b32 v250, 7, v250")
    for x in setaddr(0): I(x)
    I("s_waitcnt lgkmcnt(0)")
    A.wait_vm_tag(*[("wo", i) for i in range(4)])
    I("s_barrier")
    for nb in range(9): I(rda(nb))
    for f in range(12): I(f"ds_read_b128 {v(Qf(3 + f % 3, f // 3),4)}, v{vT+1 if f < 8 else vT+2} offset:{(f%8)*1024}")
    I("s_waitcnt lgkmcnt(0)")
    free = []; nxt = 4; Bq = []; Wq = []
    for n, (i, w_) in enumerate(H):
        A.comment(f"oproj half-step {n}")
        if n % 2 == 1 and n < 31:
            if H[n + 1][0] >= 4: A.wait_vm_tag(("wo", H[n + 1][0]))
            if n == opt.fl: A.wait_vm_tag("ost")
            I("s_barrier")
            if n == opt.fl:
                I(f"s_lshl_b32 s{t0}, s{sID}, 7\ns_add_u32 s{t0}, s{t0}, {FLAGS}")
                I(f"buffer_store_dword v249, v248, {OD}, s{t0} offen sc1", tag="f1")
                stamp(5)
            free.append(XSL if n == 1 else slot_of[i - 1])
        if n == opt.pl:
            I(f"s_and_b32 s{t0}, s{sID}, 0xfc\ns_lshl_b32 s{t0}, s{t0}, 7\ns_add_u32 s{t0}, s{t0}, {FLAGS}")
            spin("1", f"buffer_load_dword v{TMP}, v250, {OD}, s{t0} offen sc1", f"v_cmp_eq_u32 vcc, 1, v{TMP}")
            stamp(6)
            Bq = ldB(1) + ldB(2) + ldB(3)
        SC = Sched(A)
        while free and nxt < 16:
            slot_of[nxt] = free.pop(0); Wq += dma_wo(nxt, slot_of[nxt]); nxt += 1
        nb_ = opt.b0 if n < 9 else opt.b1
        if n >= 8: assert 72 - len(Bq) >= (n - 7) * 3
        if n < 8 and n >= opt.pl: assert 72 - len(Bq) + nb_ <= 48
        D1 = [(x, "B") for x in Bq[:nb_]]; Bq = Bq[nb_:]
        D2 = Wq[:3]; Wq = Wq[3:]
        D = []
        while D1 or D2:
            if D1: D.append(D1.pop(0))
            if D1 and len(D1) > 2 * len(D2): D.append(D1.pop(0))
            if D2: D.append(D2.pop(0))
        if n + 1 < len(H):
            for x in setaddr(n + 1): SC.add("va", x, cost=2, d=2)
            for nb in range(9): SC.add("rd", rda(nb), cost=2, e=3 * nb + 2)
        if opt.tl == 2:
            I(f"s_memrealtime s[100:101]\ns_waitcnt lgkmcnt(0)\nv_writelane_b32 v10, s100, {n}")
        if n > 0: SC.before(0, "s_waitcnt lgkmcnt(4)")
        for k, (x, tag) in enumerate(D): SC.add("sa", x, cost=2, e=3 + (k * 23) // len(D), tag=tag)
        mf = [f"{MF} {v(acc(q3,nb),4)}, {R(AF+nb*4,4)}, {R(Bf(i,w_,q3),4)}, " + ("0" if n == 0 else v(acc(q3, nb), 4)) for nb in range(9) for q3 in range(3)]
        SC.run(mf)
    assert not Wq
    assert nxt == 16 and not Bq
    stamp(7)
    KS = [s_ for s_ in range(NS) if s_ not in (slot_of[15], slot_of[14])][0]
    I(f"v_add_u32 v{vT}, {KS*UNIT}, v{vL16}")
    I(f"s_cmp_eq_u32 s{sJ}, s{sKQ}\ns_cbranch_scc1 L_keep")
    PK = 152
    I(f"s_lshl_b32 s{t0}, s{sB}, 2\ns_add_u32 s{t0}, s{t0}, s{sNG}\ns_lshl_b32 s{t0}, s{t0}, 2\ns_add_u32 s{t0}, s{t0}, s{sJ}\ns_lshl_b32 s{t0}, s{t0}, 2\ns_add_u32 s{t0}, s{t0}, s{sKQ}\ns_lshl_b32 s{t0}, s{t0}, 14\ns_add_u32 s{t0}, s{t0}, {PART}")
    I(f"v_lshlrev_b32 v{vT+1}, 3, v0")
    for q3 in range(3):
        for t_ in range(4):
            d = PK + (q3 * 4 + t_) * 4; o = acc(q3, 2 * t_)
            for kk in range(4): I(f"v_cvt_pk_bf16_f32 v{d+kk}, v{o+2*kk}, v{o+2*kk+1}")
            I(f"buffer_store_dwordx4 {v(d,4)}, v{vL16}, {OD}, s{t0} offen offset:{t_*1024} sc1")
        I(f"s_add_u32 s{t0}, s{t0}, 4096")
    for q3 in range(3):
        d = PK + 48 + 2 * q3; o = acc(q3, 8)
        I(f"v_cvt_pk_bf16_f32 v{d}, v{o}, v{o+1}\nv_cvt_pk_bf16_f32 v{d+1}, v{o+2}, v{o+3}")
        I(f"buffer_store_dwordx2 {v(d,2)}, v{vT+1}, {OD}, s{t0} offen offset:{q3*512} sc1")
    I("s_branch L_join")
    A.label("L_keep")
    A.hist = []
    I("s_nop 7")
    for f in range(27): I(f"ds_write_b128 v{vT}, {v(GA+4*f,4)} offset:{f*1024}")
    A.label("L_join")
    I("s_waitcnt vmcnt(0) lgkmcnt(0)\ns_barrier")
    I(f"s_lshl_b32 s{t0}, s{sID}, 7\ns_add_u32 s{t0}, s{t0}, {FLAGS+4}")
    I(f"buffer_store_dword v249, v248, {OD}, s{t0} offen sc1")
    stamp(8)
    SUM = 16
    I(f"s_lshl_b32 s{t1}, s{sW}, 11\ns_min_u32 s{t2}, s{sW}, 2\ns_mul_i32 s{t3}, s{t2}, 9216\ns_add_u32 s{t3}, s{t3}, 8192")
    I(f"v_add_u32 v{vT+1}, s{t1}, v{vT}\nv_add_u32 v{vT}, s{t3}, v{vT}")
    for q3 in range(3):
        for e in range(2): I(f"ds_read_b128 {v(SUM+(q3*2+e)*4,4)}, v{vT+1} offset:{q3*9216+e*1024}")
    I(f"ds_read_b128 {v(SUM+24,4)}, v{vT}")
    I(f"s_and_b32 s{t0}, s{sID}, 0xf3\ns_lshl_b32 s{t0}, s{t0}, 7\ns_add_u32 s{t0}, s{t0}, {FLAGS+4}")
    spin("2", f"buffer_load_dword v{TMP}, v251, {OD}, s{t0} offen sc1", f"v_cmp_eq_u32 vcc, 1, v{TMP}")
    stamp(9)
    I(f"s_lshl_b32 s{t0}, s{sB}, 2\ns_add_u32 s{t0}, s{t0}, s{sNG}\ns_lshl_b32 s{t0}, s{t0}, 2\ns_add_u32 s{t0}, s{t0}, s{sKQ}\ns_lshl_b32 s{t0}, s{t0}, 16\ns_add_u32 s{t0}, s{t0}, {PART}")
    I(f"s_lshl_b32 s{t1}, s{sW}, 10\ns_lshl_b32 s{t2}, s{t2}, 9\ns_add_u32 s{t2}, s{t2}, 12288")
    I(f"v_add_u32 v{vT}, s{t1}, v{vL16}\nv_add_u32 v{vT+1}, 4096, v{vT}\nv_add_u32 v{vT+2}, 8192, v{vT}\nv_lshlrev_b32 v{vMx}, 3, v0\nv_add_u32 v{vMx}, s{t2}, v{vMx}")
    LD = 64
    for d in range(1, 4):
        I(f"s_add_u32 s{t1}, s{sKQ}, {d}\ns_and_b32 s{t1}, s{t1}, 3\ns_lshl_b32 s{t1}, s{t1}, 14\ns_add_u32 s{t1}, s{t1}, s{t0}")
        for q3 in range(3): I(f"buffer_load_dwordx4 {v(LD+(d-1)*16+q3*4,4)}, v{vT+q3}, {OD}, s{t1} offen sc1")
        I(f"buffer_load_dwordx2 {v(LD+(d-1)*16+12,2)}, v{vMx}, {OD}, s{t1} offen sc1")
    I(f"v_and_b32 v{vDe}, 15, v0\nv_mul_u32_u24 v{vDe}, 1152, v{vDe}\nv_lshrrev_b32 v{vDo}, 4, v0\nv_lshl_add_u32 v3, v{vDo}, 3, v{vDe}\nv_lshl_add_u32 v{vDe}, v{vDo}, 4, v{vDe}")
    I(f"s_lshl_b32 s{t0}, s{sB}, 2\ns_add_u32 s{t0}, s{t0}, s{sKQ}\ns_mul_i32 s{t0}, s{t0}, {48*1152}\ns_mul_i32 s{t1}, s{sNG}, 288\ns_add_u32 s{t0}, s{t0}, s{t1}")
    I(f"s_mul_i32 s{t2}, s{sW}, {16*1152}\ns_add_u32 s{t2}, s{t2}, s{t0}\ns_add_u32 s{t2}, s{t2}, 256\ns_cmp_eq_u32 s{sW}, 3\ns_cselect_b32 s{t2}, 0x40000000, s{t2}")
    I(f"s_lshl_b32 s{t1}, s{sW}, 6\ns_add_u32 s{t0}, s{t0}, s{t1}")
    for d in range(3):
        for kk in range(14):
            x = LD + d * 16 + kk
            I(f"v_lshlrev_b32 v{TMP+(kk%2)*2}, 16, v{x}\nv_and_b32 v{TMP+(kk%2)*2+1}, 0xffff0000, v{x}")
            I(f"v_pk_add_f32 v[{SUM+2*kk}:{SUM+2*kk+1}], v[{SUM+2*kk}:{SUM+2*kk+1}], v[{TMP+(kk%2)*2}:{TMP+(kk%2)*2+1}]")
    for kk in range(14): I(f"v_cvt_pk_bf16_f32 v{PK+kk}, v{SUM+2*kk}, v{SUM+2*kk+1}")
    for sw in ("32", "16"):
        for q3 in range(3):
            d = PK + 4 * q3
            I(f"v_permlane{sw}_swap_b32 v{d}, v{d+2}\nv_permlane{sw}_swap_b32 v{d+1}, v{d+3}")
    for q3 in range(3):
        I(f"buffer_store_dwordx4 {v(PK+4*q3,4)}, v{vDe}, {OUTD}, s{t0} offen")
        I(f"s_add_u32 s{t0}, s{t0}, {16*1152}")
    I(f"buffer_store_dwordx2 {v(PK+12,2)}, v3, {OUTD}, s{t2} offen")
    if opt.stamps:
        I("s_waitcnt vmcnt(0)")
        stamp(10); stamp(11)
        I("s_mov_b32 s34, 0x20000000")
        if opt.tl:
            I(f"s_lshl_b32 s{t0}, s2, 2\ns_add_u32 s{t0}, s{t0}, s{sW}\ns_lshl_b32 s{t0}, s{t0}, 8\ns_add_u32 s{t0}, s{t0}, 0x11000000\nv_lshlrev_b32 v11, 2, v0")
            I(f"buffer_store_dword v10, v11, {OD}, s{t0} offen")
        I(f"s_cmp_lg_u32 s{sW}, 0\ns_cbranch_scc1 L_end")
        I(f"s_mul_i32 s{t0}, s2, {NST*8}\ns_add_u32 s{t0}, s{t0}, {STAMP_OFF}\nv_mov_b32 v18, 0")
        for i in range(NST):
            I(f"v_mov_b32 v16, s{SST+2*i}\nv_mov_b32 v17, s{SST+2*i+1}")
            I(f"buffer_store_dwordx2 v[16:17], v18, {OD}, s{t0} offen offset:{8*i}\ns_waitcnt vmcnt(0)")
    A.label("L_end")
    I("s_endpgm")
    for qa, t in sites:
        A.label(f"L_stub{qa}_{t}")
        I(f"s_call_b64 s[{sRet}:{sRet+1}], L_rare{qa}\ns_branch L_back{qa}_{t}")
    for qa in (0, 2, 4):
        A.label(f"L_rare{qa}")
        A.hist = []
        for qb in (qa, qa + 1):
            b = S + qb * 8; m, t_ = vMx, vT
            I(f"v_max3_f32 v{m}, v{b}, v{b+1}, v{b+2}\nv_max3_f32 v{m}, v{m}, v{b+3}, v{b+4}\nv_max3_f32 v{m}, v{m}, v{b+5}, v{b+6}\nv_max_f32 v{m}, v{m}, v{b+7}")
            I(f"v_mov_b32 v{t_}, v{m}\nv_permlane32_swap_b32 v{t_}, v{m}\nv_max_f32 v{m}, v{m}, v{t_}")
            I(f"v_mov_b32 v{t_}, v{m}\nv_permlane16_swap_b32 v{t_}, v{m}\nv_max_f32 v{m}, v{m}, v{t_}")
            I(f"v_max_f32 v{m}, 0, v{m}")
            for k in range(8): I(f"v_sub_f32 v{b+k}, v{b+k}, v{m}")
            for k in range(4): I(f"v_sub_f32 v{NEG+4*qb+k}, v{NEG+4*qb+k}, v{m}")
            I(f"v_sub_f32 v{t_}, 0, v{m}\nv_exp_f32 v{t_}, v{t_}")
            for r_ in [L + 4 * qb + k for k in range(4)] + [Of(qb, 0) + k for k in range(32)]:
                I(f"v_accvgpr_read_b32 v{t_+1}, {R(r_)}\nv_mul_f32 v{t_+1}, v{t_+1}, v{t_}\nv_accvgpr_write_b32 {R(r_)}, v{t_+1}")
        I(f"s_setpc_b64 s[{sRet}:{sRet+1}]")
    A.label("L_last")
    I("s_endpgm")
    return A.text()

REF = "standalone__mha_block_cached__near_ridge.s.ref"
HDR = open(REF).read().split("; Override")[0] if os.path.exists(REF) else ""

def main():
    ap = argparse.ArgumentParser()
    ap.add_argument("-o", default="k.s")
    ap.add_argument("--stamps", action="store_true")
    ap.add_argument("--tl", type=int, default=0)
    ap.add_argument("--xw", default="nt"); ap.add_argument("--wld", default="")
    ap.add_argument("--kvpos", type=int, default=2)
    ap.add_argument("--rpf", type=int, default=2)
    ap.add_argument("--hdu", type=int, default=4)
    ap.add_argument("--xu", type=int, default=0)
    ap.add_argument("--lat", type=int, default=3)
    ap.add_argument("--brd", type=int, default=2)
    ap.add_argument("--dsp", type=int, default=3)
    ap.add_argument("--tend", type=float, default=29.5)
    ap.add_argument("--fl", type=int, default=3)
    ap.add_argument("--pl", type=int, default=6)
    ap.add_argument("--cpf", type=int, default=1)
    ap.add_argument("--wpf", type=int, default=-3)
    ap.add_argument("--wpp", default="")
    ap.add_argument("--b0", type=int, default=8)
    ap.add_argument("--b1", type=int, default=4)
    ap.add_argument("--cp", type=int, default=0)
    ap.add_argument("--cpp", default="")
    ap.add_argument("--kvw", default="0,0,0,0,0,0,0,0,0,2,2,4,4,6,6,4,4")
    ap.add_argument("--wps", type=int, default=2)
    ap.add_argument("--bld", default="sc1")
    ap.add_argument("--hb", type=int, default=0)
    ap.add_argument("--hn0", type=int, default=32)
    ap.add_argument("--hn1", type=int, default=4)
    ap.add_argument("--win", type=int, default=0)
    opt = ap.parse_args()
    opt.kvw = [int(x) for x in opt.kvw.split(",")]
    for k in ("wld", "xw", "wpp", "cpp", "bld"): setattr(opt, k, (" " + getattr(opt, k)) if getattr(opt, k) else "")
    txt = HDR + f"; @launch grid=(256,1,1) block=(256,1,1) lds={LDS1}\n"
    txt += '.amdgcn_target "amdgcn-amd-amdhsa--gfx950"\n.text\n' + gen(opt)
    txt += f""".section .rodata,"a"
.p2align 6
.amdhsa_kernel {KN}
  .amdhsa_next_free_vgpr 512
  .amdhsa_next_free_sgpr 102
  .amdhsa_accum_offset 256
  .amdhsa_group_segment_fixed_size 0
  .amdhsa_kernarg_size 64
  .amdhsa_user_sgpr_count 2
  .amdhsa_user_sgpr_kernarg_segment_ptr 1
  .amdhsa_system_sgpr_workgroup_id_x 1
.end_amdhsa_kernel
"""
    open(opt.o, "w").write(txt)
main()
```

```python
import sys, struct, argparse, os
from asmlib import *

def f32(x): return "0x%08x" % struct.unpack("<I", struct.pack("<f", x))[0]
KN = "standalone__mha_block_cached__near_ridge_kernel"
MF = "v_mfma_f32_16x16x32_bf16"
UNIT = 32768; NS = 5
WQ0 = UNIT; WQS = 16384; NWQ = 3
X0 = WQ0 + NWQ * WQS; XPS = 1088; XS = 24 * XPS; NX = 3
LDS1 = 163840
assert X0 + NX * XS <= LDS1
AG = 256
CSCALE = 1.4426950408889634 * (128 ** -0.5)
THR = 10.0
STAMP_OFF = 0x10000000
PART = 0x2000000; FLAGS = 0x3000000; WSZ = 0x3100000
BIG = 10**9
NST = 12

def srd(A, d, lo, hi, size):
    A.I(f"s_mov_b32 s{d}, s{lo}\ns_mov_b32 s{d+1}, s{hi}\ns_mov_b32 s{d+2}, {size}\ns_mov_b32 s{d+3}, 0x20000")

class Sched:
    def __init__(self, A, cap=2):
        self.A = A; self.cap = cap; self.q = {"rd": [], "sa": [], "va": []}; self.pre = {}
    def add(self, qn, text, cost=1, e=0, d=BIG, tag=None): self.q[qn].append((cost, e, d, text, tag))
    def before(self, i, text): self.pre.setdefault(i, []).append(text)
    def emit(self, f):
        for t in f[3].split("\n"):
            if t.endswith(":"): self.A.label(t[:-1])
            else: self.A.I(t, tag=f[4])
    def flush(self, i):
        for qn in ("rd", "sa", "va"):
            q = self.q[qn]; last = -1
            for k, f in enumerate(q):
                if f[2] <= i: last = k
            for f in q[:last + 1]: self.emit(f)
            del q[:last + 1]
    def run(self, mf):
        for i, m in enumerate(mf):
            self.flush(i)
            for t in self.pre.get(i, []): self.A.I(t)
            self.A.I(m)
            b = self.cap - len(self.pre.get(i + 1, []))
            for qn in ("rd", "sa", "va"):
                q = self.q[qn]
                while q and q[0][1] <= i and q[0][0] <= b:
                    f = q.pop(0); self.emit(f); b -= f[0]
        self.flush(BIG)

def gen(opt):
    A = Asm(); I = A.I
    KVD = lambda p: ("s[4:7]" if p >> 2 else "s[28:31]")
    KVF = lambda p: (opt.vf if p >> 2 else opt.kf)
    vDe, vDo, vMx, vT = 1, 2, 6, 7
    AD = {0: (3, 4, 5), 1: (248, 249, 250), 2: (251, 252, 253)}
    vK, vVe, vVo = AD[0]
    vDw, vDx, vXa, vWa, vL16, vXb = 10, 11, 12, 13, 14, 52
    vDwo = 12
    NEG, S, KF, VF, Q, ACC = 16, 40, 88, 120, 152, 56
    O, L, ONES, PRE = AG, AG + 192, AG + 216, AG + 112
    Sb = lambda qb, kb: S + qb * 8 + kb * 4
    Qf = lambda qb, ks: Q + (qb * 4 + ks) * 4
    Of = lambda qb, db: O + (qb * 8 + db) * 4
    Af = lambda qb, db: ACC + (qb * 8 + db) * 4
    Kf = lambda kb, ks: KF + (kb * 4 + ks) * 4
    Vf = lambda db: VF + db * 4
    sW, sB, sHP, sHS, sQH, sH, sKQ, sNG, sJ, sID = 48, 49, 50, 51, 52, 53, 54, 55, 56, 57
    sKVm, sWm, sXm, sC, sThr, sWOm, sHb, sT = 58, 59, 60, 62, 61, 64, 66, 65
    sRet = 70
    t0, t1, t2, t3 = 72, 73, 74, 75
    XD, WD, KD, OD, WOD, OUTD, DBD = "s[20:23]", "s[24:27]", "s[28:31]", "s[32:35]", "s[36:39]", "s[40:43]", "s[44:47]"
    SST = 76
    def stamp(i):
        if opt.stamps: I(f"s_memrealtime s[{SST+2*i}:{SST+2*i+1}]\ns_memtime s[100:101]\ns_waitcnt lgkmcnt(0)\ns_mov_b32 s{SST+2*i+1}, s100")
    A.raw(f".globl {KN}\n.p2align 8\n.type {KN},@function\n{KN}:")
    I("s_cmp_ge_u32 s2, 256\ns_cbranch_scc1 L_end")
    stamp(0)
    I("s_load_dwordx16 s[4:19], s[0:1], 0")
    if opt.cpf:
        I("s_getpc_b64 s[36:37]")
        A.label("L_pc")
        I("s_mov_b32 s38, L_last-L_pc\ns_mov_b32 s39, 0x20000")
        I(f"s_lshr_b32 s{t0}, s2, 3\ns_and_b32 s{t0}, s{t0}, 15\ns_lshl_b32 s{t0}, s{t0}, 7")
        I(f"v_lshrrev_b32 v9, 2, v0\nv_lshlrev_b32 v9, 11, v9")
        I(f"buffer_load_dword v8, v9, s[36:39], s{t0} offen", tag="cpf")
    I(f"v_lshrrev_b32 v{vT}, 6, v0\nv_and_b32 v0, 63, v0")
    I(f"v_readfirstlane_b32 s{sW}, v{vT}")
    I(f"s_and_b32 s{t0}, s2, 7\ns_lshr_b32 s{t1}, s2, 3")
    I(f"s_and_b32 s{sB}, s{t0}, 1\ns_lshl_b32 s{sB}, s{sB}, 3\ns_and_b32 s{t2}, s{t1}, 7\ns_add_u32 s{sB}, s{sB}, s{t2}")
    I(f"s_lshr_b32 s{sKQ}, s{t0}, 1\ns_lshr_b32 s{sNG}, s{t1}, 3\ns_lshl_b32 s{sHP}, s{sKQ}, 2\ns_add_u32 s{sHP}, s{sHP}, s{sNG}")
    I(f"s_lshr_b32 s{sHS}, s{sW}, 1\ns_and_b32 s{sQH}, s{sW}, 1")
    I(f"s_lshl_b32 s{sH}, s{sHP}, 1\ns_add_u32 s{sH}, s{sH}, s{sHS}")
    g, r, c, tt = 16, 17, 18, 19
    I(f"v_lshrrev_b32 v{g}, 4, v0\nv_bfe_u32 v{r}, v0, 2, 2\nv_and_b32 v{c}, 3, v0\nv_lshlrev_b32 v{vL16}, 4, v0")
    I(f"v_xor_b32 v{vDx}, v{c}, v{g}\nv_and_b32 v{tt}, 4, v0\nv_or_b32 v{vDx}, v{vDx}, v{tt}\nv_lshlrev_b32 v{vDx}, 4, v{vDx}")
    I(f"v_lshrrev_b32 v{tt}, 3, v0\nv_mul_u32_u24 v{tt}, 1152, v{tt}\nv_add_u32 v{vDx}, v{vDx}, v{tt}")
    I(f"s_mul_i32 s{t0}, s{sW}, {48*1152}\ns_mul_i32 s{t1}, s{sB}, 221184\ns_add_u32 s{t0}, s{t0}, s{t1}")
    I(f"v_add_u32 v{vDx}, s{t0}, v{vDx}")
    I(f"s_mul_i32 s{sXm}, s{sW}, {6*XPS}\ns_add_u32 s{sXm}, s{sXm}, {X0}")
    I(f"v_lshlrev_b32 v{vDe}, 4, v{c}\nv_lshl_add_u32 v{vDe}, v{g}, 6, v{vDe}")
    I(f"v_lshl_add_u32 v{vDw}, v{r}, 13, v{vDe}")
    I(f"s_lshl_b32 s{t0}, s{sQH}, 15\ns_lshl_b32 s{t1}, s{sH}, 8\ns_add_u32 s{t0}, s{t0}, s{t1}")
    I(f"v_add_u32 v{vDw}, s{t0}, v{vDw}")
    I(f"s_lshl_b32 s{sWm}, s{sW}, 12\ns_add_u32 s{sWm}, s{sWm}, {WQ0}")
    I(f"s_lshl_b32 s{t0}, s{sQH}, 12\ns_lshl_b32 s{sKVm}, s{sHS}, 14\ns_add_u32 s{sKVm}, s{sKVm}, s{t0}")
    I(f"v_lshl_add_u32 v{vDe}, v{r}, 8, v{vDe}\nv_add_u32 v{vDe}, s{t0}, v{vDe}\nv_xor_b32 v{vDo}, 32, v{vDe}")
    I("s_waitcnt lgkmcnt(0)")
    srd(A, 20, 4, 5, 3538944)
    srd(A, 24, 10, 11, 4718592)
    def dma_x(j, ps=range(6)):
        return [(f"s_add_u32 m0, s{sXm}, {(j % NX) * XS + p * XPS}\ns_mov_b32 s{t0}, {j * 128 + p * 8 * 1152}\nbuffer_load_dwordx4 v{vDx}, {XD}, s{t0} offen{opt.xw} lds", ("x", j)) for p in ps]
    def dma_w(st):
        return [(f"s_add_u32 m0, s{sWm}, {(st % NWQ) * WQS + p * 1024}\ns_mov_b32 s{t0}, {(st * 32 + p * 8) * 8192}\nbuffer_load_dwordx4 v{vDw}, {WD}, s{t0} offen{opt.xw} lds", ("w", st)) for p in range(4)]
    def dma_kv(u):
        return [(f"s_add_u32 m0, s{sKVm}, {(u % NS) * UNIT + (p >> 2) * 8192}\ns_mov_b32 s{t0}, {u * 8192}\nbuffer_load_dwordx4 v{vDo if p & 1 else vDe}, {KVD(p)}, s{t0} offen offset:{1024*(p&3)}{KVF(p)} lds", ("kv", u)) for p in range(8)]
    def pre(u, p):
        if u == NS: return AG + 220 + 4 * p
        return (20 + 4 * p) if u == 1 else PRE + ((u - 2) * 8 + p) * 4
    def ld_kv(u):
        return [(f"s_mov_b32 s{t0}, {u * 8192}\nbuffer_load_dwordx4 {R(pre(u, p), 4)}, v{vDo if p & 1 else vDe}, {KVD(p)}, s{t0} offen offset:{1024*(p&3)}{KVF(p)}", ("kvr", u)) for p in range(8)]
    def issue(L_):
        for t, tag in L_: I(t, tag=tag)
    issue(dma_x(0) + dma_w(0) + dma_w(1))
    I(f"s_lshl_b32 s{t0}, s{sB}, 5\ns_add_u32 s{t0}, s{t0}, s{sH}\ns_lshl_b32 s{t0}, s{t0}, 18")
    I(f"s_add_u32 s28, s6, s{t0}\ns_addc_u32 s29, s7, 0\ns_mov_b32 s30, 262144\ns_mov_b32 s31, 0x20000")
    I(f"s_add_u32 s4, s8, s{t0}\ns_addc_u32 s5, s9, 0\ns_mov_b32 s6, 262144\ns_mov_b32 s7, 0x20000")
    srd(A, 32, 18, 19, WSZ)
    srd(A, 36, 12, 13, 4718592)
    srd(A, 40, 14, 15, 3538944)
    srd(A, 44, 16, 17, 256)
    I(f"s_lshl_b32 s{sJ}, s{sQH}, 1\ns_add_u32 s{sJ}, s{sJ}, s{sHS}\ns_lshl_b32 s{sID}, s{sB}, 4\ns_add_u32 s{sID}, s{sID}, s{sHP}")
    def lane0(dst):
        I(f"v_or_b32 v{dst}, s{sW}, v0\nv_min_u32 v{dst}, 1, v{dst}\nv_lshlrev_b32 v{dst}, 30, v{dst}")
    lane0(53)
    I(f"v_mov_b32 v54, 0\nv_mov_b32 v55, 0\ns_lshl_b32 s{t0}, s{sID}, 7\ns_add_u32 s{t0}, s{t0}, {FLAGS}")
    I(f"buffer_store_dwordx2 v[54:55], v53, {OD}, s{t0} offen sc1", tag="clr")
    I(f"v_and_b32 v{tt}, 1, v{r}\nv_lshlrev_b32 v{tt}, 1, v{tt}\nv_xor_b32 v{tt}, v{tt}, v{g}\nv_lshlrev_b32 v{vK}, 4, v{tt}")
    I(f"v_lshl_add_u32 v{vK}, v{c}, 6, v{vK}\nv_lshl_add_u32 v{vK}, v{r}, 10, v{vK}")
    I(f"s_lshl_b32 s{t0}, s{sHS}, 14")
    I(f"v_add_u32 v{vK}, s{t0}, v{vK}")
    I(f"v_lshlrev_b32 v{vWa}, 10, v{g}\nv_lshl_add_u32 v{vWa}, v{r}, 6, v{vWa}")
    I(f"v_lshl_add_u32 v{vVe}, v{c}, 3, v{vWa}\nv_and_b32 v{tt}, 1, v{g}\nv_lshl_add_u32 v{vVe}, v{tt}, 5, v{vVe}")
    I(f"s_add_u32 s{t0}, s{t0}, 8192")
    I(f"v_add_u32 v{vVe}, s{t0}, v{vVe}\nv_xor_b32 v{vVo}, 32, v{vVe}")
    I(f"s_lshl_b32 s{t1}, s{sHS}, 13\ns_add_u32 s{t1}, s{t1}, {WQ0}")
    I(f"v_lshl_add_u32 v{vWa}, v{c}, 4, v{vWa}\nv_add_u32 v{vWa}, s{t1}, v{vWa}")
    I(f"v_bfe_u32 v{vXa}, v0, 1, 2\nv_xor_b32 v{vXa}, v{vXa}, v{g}\nv_lshlrev_b32 v{vXa}, 4, v{vXa}")
    I(f"v_and_b32 v{tt}, 7, v0\nv_lshl_add_u32 v{vXa}, v{tt}, 7, v{vXa}")
    I(f"v_bfe_u32 v{tt}, v0, 3, 1\nv_mul_u32_u24 v{tt}, {XPS}, v{tt}\nv_add_u32 v{vXa}, v{vXa}, v{tt}")
    I(f"s_mul_i32 s{t0}, s{sJ}, {6*XPS}\ns_add_u32 s{t0}, s{t0}, {X0}\ns_xor_b32 s{t1}, s{sJ}, 1\ns_mul_i32 s{t1}, s{t1}, {6*XPS}\ns_add_u32 s{t1}, s{t1}, {X0}")
    I(f"v_add_u32 v{vXb}, s{t1}, v{vXa}\nv_add_u32 v{vXa}, s{t0}, v{vXa}")
    I(f"v_mov_b32 v{vT}, 0x3f803f80")
    for k in range(4): I(f"v_accvgpr_write_b32 {R(ONES+k)}, v{vT}")
    I(f"s_mov_b32 s{sC}, {f32(CSCALE)}\ns_mov_b32 s{sC+1}, {f32(CSCALE)}\ns_mov_b32 s{sThr}, {f32(THR)}")
    if not opt.hb: issue(dma_x(1, range(3)) + dma_w(2) + dma_x(1, range(3, 6)))
    for k in range(3): I(f"v_add_u32 v{AD[1][k]}, 0x10000, v{AD[0][k]}\nv_add_u32 v{AD[2][k]}, 0x20000, v{AD[0][k]}")
    I(f"v_add_u32 v254, s{sKVm}, v{vL16}\nv_add_u32 v255, 0x10000, v254\nv_add_u32 v15, 0x20000, v254")
    for d in range(4):
        I(f"s_add_u32 s{t0}, s{sNG}, {d}\ns_and_b32 s{t0}, s{t0}, 3\ns_lshl_b32 s{t0}, s{t0}, 1\ns_lshl_b32 s{t1}, s{sKQ}, 3\ns_add_u32 s{t0}, s{t0}, s{t1}\ns_add_u32 s{t0}, s{t0}, s{sHS}")
        I(f"s_lshl_b32 s{t0}, s{t0}, 3\ns_add_u32 s{t0}, s{t0}, s{sQH}\ns_mul_i32 s{sHb+d}, s{t0}, {16*1152}")
    I(f"s_mul_i32 s{sWOm}, s{sHS}, 12288\ns_lshl_b32 s{t0}, s{sQH}, 11\ns_add_u32 s{sWOm}, s{sWOm}, s{t0}")
    if opt.cp:
        I(f"s_and_b32 s{t0}, s2, 1\ns_lshl_b32 s{t0}, s{t0}, 7\ns_lshr_b32 s{t1}, s2, 3\ns_lshl_b32 s{t1}, s{t1}, 2\ns_add_u32 s{t1}, s{t1}, s{sW}\ns_add_u32 s{t0}, s{t0}, s{t1}\ns_mul_i32 s{t0}, s{t0}, {12*1152}")
        I(f"v_min_u32 v6, 11, v0\nv_mul_u32_u24 v6, 1152, v6\nv_add_u32 v6, s{t0}, v6")
        I(f"s_lshr_b32 s{t0}, s{t1}, 1\ns_lshl_b32 s{t0}, s{t0}, 13\ns_and_b32 s{t1}, s{t1}, 1\ns_lshl_b32 s{t1}, s{t1}, 10\ns_add_u32 s{t0}, s{t0}, s{t1}\ns_lshl_b32 s{t1}, s{sKQ}, 11\ns_add_u32 s{t0}, s{t0}, s{t1}")
        I(f"v_and_b32 v9, 7, v0\nv_lshlrev_b32 v9, 7, v9\nv_add_u32 v9, s{t0}, v9")
    def cpx(j): return [(f"buffer_load_dword v8, v6, {XD}, 0 offen offset:{128*j}{opt.cpp}", "cp")] if j < 9 else []
    def cpw(j): return [(f"s_mov_b32 s{t0}, {j*64*8192}\nbuffer_load_dword v8, v9, {WD}, s{t0} offen{opt.cpp}", "cp")] if j < 9 else []
    if opt.hb:
        for j in range(1, opt.cp): issue(cpw(j) + cpx(j))
        issue(dma_w(2) + dma_x(1))
    elif opt.cp:
        A.auto_vm = False
        for j in range(2, opt.cp): issue(cpw(j) + (cpx(j + 1) if j + 1 >= 3 else []))
        A.auto_vm = True
    def wpf_addr(dst):
        I(f"s_lshr_b32 s{t0}, s2, 3\ns_lshl_b32 s{t1}, s{sKQ}, 5\ns_add_u32 s{t0}, s{t0}, s{t1}\ns_lshl_b32 s{t0}, s{t0}, 2\ns_add_u32 s{t0}, s{t0}, s{sW}\ns_mul_i32 s{t0}, s{t0}, 9216")
        I(f"v_and_b32 v{dst}, 15, v0\nv_lshlrev_b32 v{dst}, 7, v{dst}\nv_add_u32 v{dst}, s{t0}, v{dst}")
    def wpf_(k, a_=7, d_=8):
        return (f"s_mov_b32 s{t3}, {min(k * 2048, 7168)}\nbuffer_load_dword v{d_}, v{a_}, {WOD}, s{t3} offen{opt.wpp}", "cp")
    if opt.wpf < 0: wpf_addr(7)
    WA = {0: 254, 1: 255, 2: 15}
    def wr_kv(u):
        sl = u % NS
        return [f"ds_write_b128 v{WA[sl >> 1]}, {R(pre(u, p), 4)} offset:{(sl & 1) * UNIT + (p >> 2) * 8192 + (p & 3) * 1024}" for p in range(8)]
    Wf = lambda st, db: AG + (st % 2) * 56 + db * 4
    Xf = lambda st, qb: AG + (st % 2) * 56 + 32 + qb * 4
    def reads(st):
        wo_ = (st % NWQ) * WQS; xo_ = ((st >> 1) % NX) * XS + (st & 1) * 64
        R_ = [f"ds_read_b128 {R(Xf(st,qb),4)}, v{vXa if qb < 3 else vXb} offset:{xo_ + (qb%3)*2*XPS}" for qb in range(6)]
        for db in range(8):
            for e in range(2):
                R_.append(f"ds_read_b64_tr_b16 {R(Wf(st,db)+2*e,2)}, v{vWa} offset:{wo_ + e*4096 + (db>>1)*256 + (db&1)*8}")
        return R_
    A.wait_vm_tag(("w", 0), ("x", 0))
    I("s_barrier")
    stamp(1)
    for x in reads(0): I(x)
    kvq = dma_kv(0)
    for u in range(1, opt.rpf + 1): kvq += ld_kv(u)
    def qpack(qb):
        L_ = []
        for db in range(7, -1, -1):
            o = Af(qb, db); d = Qf(qb, db >> 1) + 2 * (db & 1)
            L_.append(f"v_pk_mul_f32 v[{o}:{o+1}], v[{o}:{o+1}], s[{sC}:{sC+1}]\nv_pk_mul_f32 v[{o+2}:{o+3}], v[{o+2}:{o+3}], s[{sC}:{sC+1}]")
            L_.append(f"v_cvt_pk_bf16_f32 v{d+1}, v{o+2}, v{o+3}\nv_cvt_pk_bf16_f32 v{d}, v{o}, v{o+1}")
        return L_
    for st in range(18):
        A.comment(f"qproj step {st}")
        if opt.tl: I("s_memrealtime s[100:101]")
        I("s_waitcnt lgkmcnt(0)")
        if opt.tl: I(f"v_writelane_b32 v55, s100, {32+st}")
        if st + 1 < 18: A.wait_vm_tag(("w", st + 1), ("x", (st + 1) >> 1))
        I("s_barrier")
        if not opt.hb:
            D = []
            if st + 3 < 18: D += dma_w(st + 3)
            if st == 0: D += dma_x(2)
            elif st % 2 == 1 and (st - 1) // 2 + 3 < 9: D += dma_x((st - 1) // 2 + 3, range(3))
            elif st % 2 == 0 and (st - 2) // 2 + 3 < 9: D += dma_x((st - 2) // 2 + 3, range(3, 6))
            if opt.cp: D = (cpw(st // 2 + opt.cp) if st % 2 == 0 else cpx(st // 2 + opt.cp + 1)) + D
            if st == 15 and opt.rpf < 3 <= opt.hdu: kvq += dma_kv(3)
            if st < 17:
                n = opt.kvw[st]
                D += kvq[:n]; kvq = kvq[n:]
                if opt.wpf < 0 and -opt.wpf <= st < -opt.wpf + 5: D = [wpf_(st + opt.wpf)] + D
        else:
            if st == 15 and opt.rpf < 3 <= opt.hdu: kvq += dma_kv(3)
            far = []; near = []
            if st % 2 == 0: far += cpw(st // 2 + opt.cp) + cpx(st // 2 + opt.cp)
            if opt.wpf < 0 and st % 2 == 0 and 0 <= (st + opt.wpf) // 2 < 5 and st >= -opt.wpf: far.append(wpf_((st + opt.wpf) // 2))
            if st < 17:
                n = opt.kvw[st]; far += kvq[:n]; kvq = kvq[n:]
            if st + 3 < 18: near += dma_w(st + 3)
            if st % 2 == 1 and (st + 3) // 2 < 9: near += dma_x((st + 3) // 2)
            D = []
            spread = (st >= 15)
            for k, x in enumerate(far): D.append((x, (k * 44) // len(far) if spread else k))
            for k, x in enumerate(near): D.append((x, (opt.hn0 + (k * (46 - opt.hn0)) // len(near)) if st % 2 == 0 else opt.hn1 + (k * (44 - opt.hn1)) // len(near)))
        SC = Sched(A)
        if st < 17:
            R_ = reads(st + 1)
            if opt.hb:
                for k in range(0, 22, 2): SC.add("rd", R_[k] + "\n" + R_[k + 1], cost=2, e=(9 + k if st % 2 == 0 else 2 * k))
                for (t, tag), e_ in D: SC.add("sa", t, cost=2, e=e_, tag=tag)
            else:
                for k in range(0, 22, 2): SC.add("rd", R_[k] + "\n" + R_[k + 1], cost=2, e=2 * k)
                for k, (t, tag) in enumerate(D): SC.add("sa", t, cost=2, e=1 + (k * 44) // len(D), tag=tag)
            mf = [f"{MF} {v(Af(qb,db),4)}, {R(Wf(st,db),4)}, {R(Xf(st,qb),4)}, " + ("0" if st == 0 else v(Af(qb, db), 4)) for db in range(8) for qb in range(6)]
        else:
            D = kvq
            for u in range(opt.rpf + 1, opt.hdu + 1):
                if u != 3: D = D + dma_kv(u)
            if opt.xu == 1: D = D + ld_kv(NS)
            W_ = []
            for u in range(1, opt.rpf + 1): W_ += wr_kv(u)
            P_ = []
            for qb in range(5, -1, -1): P_ += [(t, (5 - qb) * 8 + 11) for t in qpack(qb)]
            nW = min(len(W_), 20)
            for k in range(0, nW, 2): SC.add("rd", W_[k] + "\n" + W_[k + 1], cost=2, e=k // 2)
            W_ = W_[nW:]
            for k, (t, e_) in enumerate(P_):
                SC.add("va", t, cost=2, e=e_)
                if W_ and k % 3 == 2: SC.add("va", W_.pop(0), cost=1, e=e_)
                if D and k % opt.dsp == 0:
                    t2_, tag = D.pop(0); SC.add("va", t2_, cost=2, e=e_, tag=tag)
            for t in W_: SC.add("va", t, cost=1)
            for t2_, tag in D: SC.add("va", t2_, cost=2, tag=tag)
            mf = [f"{MF} {v(Af(qb,db),4)}, {R(Wf(st,db),4)}, {R(Xf(st,qb),4)}, {v(Af(qb,db),4)}" for qb in range(5, -1, -1) for db in range(7, -1, -1)]
        SC.run(mf)
    I(f"v_bfe_u32 v{vDwo}, v0, 1, 2\nv_lshrrev_b32 v{vT}, 4, v0\nv_xor_b32 v{vDwo}, v{vDwo}, v{vT}\nv_lshlrev_b32 v{vDwo}, 5, v{vDwo}")
    I(f"v_and_b32 v{vT}, 1, v0\nv_lshl_add_u32 v{vDwo}, v{vT}, 4, v{vDwo}")
    I(f"v_lshrrev_b32 v{vT}, 3, v0\nv_mul_u32_u24 v{vT}, 1152, v{vT}\nv_add_u32 v{vDwo}, v{vDwo}, v{vT}")
    I(f"s_lshl_b32 s{t0}, s{sNG}, 8")
    I(f"v_add_u32 v{vDwo}, s{t0}, v{vDwo}")
    I("s_waitcnt lgkmcnt(0)")
    stamp(2)
    if opt.tl: I(f"v_mov_b32 v10, v55\ns_nop 1\nv_writelane_b32 v10, s{SST}, 63\nv_writelane_b32 v10, s{SST+4}, 50")
    def dma_wo(i, slot):
        L_ = []
        for rgl in range(2):
            for ln in range(3):
                t = f"s_add_u32 m0, s{sWOm}, {slot * UNIT + (ln * 4 + rgl) * 1024 - 128 * ln}\n"
                if ln == 0: t += f"s_add_u32 s{sT}, s{sHb + (i >> 2)}, {((i & 3) * 32 + rgl * 8) * 1152}\n"
                L_.append((t + f"buffer_load_dwordx4 v{vDwo}, {WOD}, s{sT} offen offset:{128*ln}{opt.wld} lds", ("wo", i)))
        return L_
    done = set(range(0, max(opt.rpf, opt.hdu) + 1)) | ({NS} if opt.xu else set())
    units = [u for u in range(32) if u not in done]
    plan = {t: [] for t in range(32)}
    npc = 8 * len(units); ts = max(0.05, units[0] - 4 + 0.05); last = 0
    for k in range(npc):
        u = units[k // 8]; p = k % 8
        tau = max(ts + (opt.tend - ts) * k / npc, u - 4 + 0.05 + 0.02 * p, last + 0.02); last = tau
        t = f"buffer_load_dwordx4 v{vDo if p & 1 else vDe}, {KVD(p)}, s{sT} offen offset:{1024*(p&3)}{KVF(p)} lds"
        if p == 0: plan[int(tau)].append((tau - int(tau), f"s_add_u32 m0, s{sKVm}, {(u % NS) * UNIT}\ns_mov_b32 s{sT}, {u * 8192}", None, 2))
        if p == 4: plan[int(tau)].append((tau - int(tau), f"s_add_u32 m0, s{sKVm}, {(u % NS) * UNIT + 8192}", None, 1))
        if opt.win: plan[int(tau)].append((tau - int(tau), f"s_waitcnt vmcnt({opt.win})\n" + t, ("kv", u), 2))
        else: plan[int(tau)].append((tau - int(tau), t, ("kv", u), 1))
    slot_of = {}
    W0 = []
    for i in range(4):
        slot_of[i] = (32 + i) % NS
        W0 += [(i, x) for x in dma_wo(i, slot_of[i])]
    for k, (i, (t, tag)) in enumerate(W0):
        tau = max(last + 0.02, opt.tend + (31.9 - opt.tend) * k / 24, 28 + i + 0.05); last = tau
        assert tau < 32
        plan[int(tau)].append((tau - int(tau), t, tag, 2))
    if opt.wpf > 0:
        wpf_addr(11)
        for k in range(5): plan[opt.wpf + k * opt.wps].append((0.97, wpf_(k, 11, 13)[0], "cp", 1))
    lane0(13 if opt.wpf <= 0 else 10) if not opt.tl else lane0(13)
    A.wait_vm_tag("clr")
    I(f"v_mov_b32 v{vT}, 1\nbuffer_store_byte v{vT}, v{13 if (opt.wpf <= 0 or opt.tl) else 10}, {DBD}, s{sID} offen sc1", tag="clr2")
    if opt.xu == 2:
        plan[0] = [(0.05 + 0.11 * k, t, tag, 2) for k, (t, tag) in enumerate(ld_kv(NS))] + plan[0]
    sites = []
    def pv(qb, init):
        m = [f"{MF} {R(Of(qb,db),4)}, {v(Vf(db),4)}, {v(S+qb*8,4)}, " + ("0" if init else R(Of(qb, db), 4)) for db in range(8)]
        m.append(f"{MF} {R(L+4*qb,4)}, {R(ONES,4)}, {v(S+qb*8,4)}, " + ("0" if init else R(L + 4 * qb, 4)))
        return m
    def qk(qb, init):
        m = []
        for kb in range(2):
            for ks in range(4):
                cc = ("0" if init else v(NEG + 4 * qb, 4)) if ks == 0 else v(Sb(qb, kb), 4)
                m.append(f"{MF} {v(Sb(qb,kb),4)}, {v(Kf(kb,ks),4)}, {v(Qf(qb,ks),4)}, {cc}")
        return m
    def E(qb):
        b = S + qb * 8; L_ = []
        for h in range(2):
            for k in range(4): L_.append(f"v_exp_f32 v{b+4*h+k}, v{b+4*h+k}")
            L_.append(f"v_cvt_pk_bf16_f32 v{b+2*h}, v{b+4*h}, v{b+4*h+1}\nv_cvt_pk_bf16_f32 v{b+2*h+1}, v{b+4*h+2}, v{b+4*h+3}")
        return L_
    def chk(qa, init):
        m = vMx; t_ = vT; L_ = []
        if init:
            for qb in (qa, qa + 1):
                b = S + qb * 8
                L_.append(f"v_max3_f32 v{m}, v{b}, v{b+1}, v{b+2}\nv_max3_f32 v{m}, v{m}, v{b+3}, v{b+4}")
                L_.append(f"v_max3_f32 v{m}, v{m}, v{b+5}, v{b+6}\nv_max_f32 v{m}, v{m}, v{b+7}")
                L_.append(f"v_mov_b32 v{t_}, v{m}"); L_.append(f"v_permlane32_swap_b32 v{t_}, v{m}\nv_max_f32 v{m}, v{m}, v{t_}")
                L_.append(f"v_mov_b32 v{t_}, v{m}"); L_.append(f"v_permlane16_swap_b32 v{t_}, v{m}\nv_max_f32 v{m}, v{m}, v{t_}")
                for k in range(0, 8, 2): L_.append(f"v_sub_f32 v{b+k}, v{b+k}, v{m}\nv_sub_f32 v{b+k+1}, v{b+k+1}, v{m}")
                for k in range(0, 4, 2): L_.append(f"v_sub_f32 v{NEG+4*qb+k}, 0, v{m}\nv_sub_f32 v{NEG+4*qb+k+1}, 0, v{m}")
            return L_
        b = S + qa * 8; m2 = vT + 2
        L_.append(f"v_max3_f32 v{m}, v{b}, v{b+1}, v{b+2}\nv_max3_f32 v{m2}, v{b+8}, v{b+9}, v{b+10}")
        L_.append(f"v_max3_f32 v{m}, v{m}, v{b+3}, v{b+4}\nv_max3_f32 v{m2}, v{m2}, v{b+11}, v{b+12}")
        L_.append(f"v_max3_f32 v{m}, v{m}, v{b+5}, v{b+6}\nv_max3_f32 v{m2}, v{m2}, v{b+13}, v{b+14}")
        L_.append(f"v_max3_f32 v{m}, v{m}, v{b+7}, v{b+15}\nv_max_f32 v{m}, v{m}, v{m2}")
        L_.append(f"v_cmp_lt_f32 vcc, s{sThr}, v{m}")
        return L_
    def body(t):
        cur = t < 32; prev = t > 0; icur = t == 0; iprev = t == 1
        sl = t % NS; so = (sl & 1) * UNIT; aK, aVe, aVo = AD[sl >> 1]
        if cur: A.wait_vm_tag(("kv", t))
        I("s_barrier")
        order = [("qk", 5, 1), ("pv", 2, 1), ("qk", 0, 0), ("pv", 3, 1), ("qk", 1, 0), ("pv", 4, 1), ("qk", 2, 0), ("pv", 5, 1), ("qk", 3, 0), ("pv", 0, 0), ("qk", 4, 0), ("pv", 1, 0)]
        mf = []; st_ = {}; en = {}
        for kind, qb, pr in order:
            if (pr and not prev) or (not pr and not cur): continue
            ini = iprev if pr else icur
            st_[(kind, qb, pr)] = len(mf)
            mf += qk(qb, ini) if kind == "qk" else pv(qb, ini)
            en[(kind, qb, pr)] = len(mf) - 1
        n = len(mf)
        SC = Sched(A)
        if cur:
            k0 = 0 if prev else -100
            for i in range(0, 8, 2):
                tx = "\n".join(f"ds_read_b128 {v(Kf(j>>2,j&3),4)}, v{aK} offset:{so + (j>>2)*4096 + (j&3)*256}" for j in (i, i + 1))
                SC.add("rd", tx, cost=2, e=k0 + i + 1, d=st_[("qk", 0, 0)])
            extra = wr_kv(NS) if (t == 1 and opt.xu) else []
            for k in range(0, len(extra), 2): SC.add("rd", extra[k] + "\n" + extra[k + 1], cost=2, e=20 + 2 * k)
            v0_ = st_[("pv", 5, 1)] if prev else st_[("qk", 1, 0)]
            for db in range(8):
                tx = "\n".join(f"ds_read_b64_tr_b16 {v(Vf(db)+2*e,2)}, v{aVo if db & 1 else aVe} offset:{so + e*4096 + (db>>1)*256}" for e in range(2))
                SC.add("rd", tx, cost=2, e=v0_ + db, d=st_[("pv", 0, 0)])
            if prev and opt.tl == 1:
                SC.before(st_[("qk", 0, 0)] - 4, "s_memrealtime s[100:101]")
                SC.before(st_[("qk", 0, 0)] + 1, f"v_writelane_b32 v10, s100, {t-1}")
            if prev: SC.before(st_[("qk", 0, 0)], "s_waitcnt lgkmcnt(0)")
            SC.before(st_[("pv", 0, 0)], "s_waitcnt lgkmcnt(0)")
            for fr, tx, tag, co in plan[t]: SC.add("sa", tx, cost=co, e=int(fr * n), tag=tag)
        else:
            SC.add("sa", f"s_lshl_b32 s{t0}, s{sB}, 4\nv_mov_b32 v{vDe}, 0", cost=2)
            SC.add("sa", f"buffer_load_dwordx4 v[248:251], v{vDe}, {DBD}, s{t0} offen sc1", tag="dbg")
        seq = []
        def addE(qb, d): seq.extend((x, 0, d) for x in E(qb))
        def addchk(qa, pr, d):
            ini = iprev if pr else icur
            e = en[("qk", qa + 1, pr)] + opt.lat
            C_ = [(x, e, d) for x in chk(qa, ini)]
            if ini: seq.extend(C_); return
            tail = seq[len(seq) - opt.brd:] if len(seq) >= opt.brd else []
            del seq[len(seq) - len(tail):]
            dd = min([d] + [x[2] for x in tail])
            seq.extend((x, e_, dd) for x, e_, _ in C_)
            seq.extend(tail)
            sites.append((qa, t))
            seq.append((f"s_cbranch_vccnz L_stub{qa}_{t}\nL_back{qa}_{t}:", e, d))
        if prev:
            addE(3, st_[("pv", 3, 1)])
            addchk(4, 1, st_[("pv", 4, 1)]); addE(4, st_[("pv", 4, 1)]); addE(5, st_[("pv", 5, 1)])
        if cur:
            addchk(0, 0, st_[("pv", 0, 0)]); addE(0, st_[("pv", 0, 0)]); addE(1, st_[("pv", 1, 0)])
            addchk(2, 0, BIG); addE(2, BIG)
        for x, e, d in seq: SC.add("va", x, cost=(1 if "L_back" in x else (2 if ("\n" in x or "v_exp" in x) else 1)), e=e, d=d)
        SC.run(mf)
        if A.lg: I("s_waitcnt lgkmcnt(0)")
    for t in range(33): body(t)
    stamp(3)
    GA = 16
    acc = lambda q3, nb: GA + (q3 * 9 + nb) * 4
    AF = AG + 220
    RC, TMP = 124, 136
    aB, aC = (1, 2, 3, 4), (252, 253, 254, 255)
    vE0, vE1 = 5, 6
    for qb in range(6): I(f"v_accvgpr_read_b32 v{RC+qb*2}, {R(L+4*qb)}")
    for qb in range(6): I(f"v_rcp_f32 v{RC+qb*2}, v{RC+qb*2}")
    I(f"s_lshl_b32 s{t0}, s{sB}, 5\ns_add_u32 s{t0}, s{t0}, s{sH}\ns_lshl_b32 s{t0}, s{t0}, 2\ns_xor_b32 s{t1}, s{sJ}, 1\ns_add_u32 s{t1}, s{t1}, s{t0}\ns_add_u32 s{t0}, s{t0}, s{sJ}")
    I(f"s_mul_i32 s{t0}, s{t0}, 12288\ns_mul_i32 s{t1}, s{t1}, 12288")
    for qb in range(6): I(f"v_mov_b32 v{RC+qb*2+1}, v{RC+qb*2}")
    XSL = 31 % NS
    lo2, lo3 = slot_of[0], slot_of[1]
    def exaddr(d0, d1, sw):
        I(f"s_lshl_b32 s{t2}, s{sw}, 13\ns_add_u32 s{t2}, s{t2}, {XSL*UNIT}")
        I(f"v_add_u32 v{d0}, s{t2}, v{vL16}")
        I(f"s_lshr_b32 s{t2}, s{sw}, 1\ns_mul_i32 s{t2}, s{t2}, {(lo3-lo2)*UNIT}\ns_and_b32 s{t3}, s{sw}, 1\ns_lshl_b32 s{t3}, s{t3}, 12\ns_add_u32 s{t2}, s{t2}, s{t3}\ns_add_u32 s{t2}, s{t2}, {lo2*UNIT+24576}")
        I(f"v_add_u32 v{d1}, s{t2}, v{vL16}")
    exaddr(vE0, vE1, sW)
    k = 0
    for half in (1, 0):
        for ks in range(4):
            for q3 in range(3):
                qb = 3 * half + q3; d = Qf(qb, ks); tmp = TMP + (k % 2) * 8; k += 1
                f = ks * 3 + q3
                for kk in range(8): I(f"v_accvgpr_read_b32 v{tmp+kk}, {R(Of(qb, 2*ks) + kk)}")
                for kk in range(0, 8, 2): I(f"v_pk_mul_f32 v[{tmp+kk}:{tmp+kk+1}], v[{tmp+kk}:{tmp+kk+1}], v[{RC+qb*2}:{RC+qb*2+1}]")
                for kk in range(4): I(f"v_cvt_pk_bf16_f32 v{d+kk}, v{tmp+2*kk}, v{tmp+2*kk+1}")
                I(f"buffer_store_dwordx4 {v(d,4)}, v{vL16}, {OD}, s{t0+half} offen offset:{(f&3)*1024} sc1", tag="ost")
                if f % 4 == 3: I(f"s_add_u32 s{t0+half}, s{t0+half}, 4096")
                if half: I(f"ds_write_b128 v{vE0 if f < 8 else vE1}, {v(d,4)} offset:{(f%8)*1024}")
    stamp(4)
    I(f"v_lshrrev_b32 v{vT}, 2, v0\nv_lshlrev_b32 v{vT}, 7, v{vT}\nv_and_b32 v{vT+1}, 3, v0\nv_lshl_add_u32 v{vT}, v{vT+1}, 3, v{vT}\nv_bfe_u32 v{vT+1}, v0, 3, 2")
    for kk in range(4):
        I(f"s_add_u32 s{t2}, s{sNG}, {kk}\ns_and_b32 s{t3}, s{t2}, 3\ns_lshr_b32 s{t2}, s{t2}, 2\ns_lshl_b32 s{t2}, s{t2}, 12")
        I(f"v_xor_b32 v{aB[kk]}, s{t3}, v{vT+1}\nv_lshl_add_u32 v{aB[kk]}, v{aB[kk]}, 5, v{vT}\nv_add_u32 v{aB[kk]}, s{t2}, v{aB[kk]}")
    sOwn, sOth = sXm, sWm
    I(f"s_mul_i32 s{sOwn}, s{sHS}, 12288\ns_sub_u32 s{sOth}, 12288, s{sOwn}")
    I(f"s_xor_b32 s{sKVm}, s{sW}, 2")
    exaddr(vT + 1, vT + 2, sKVm)
    H = [(i, w_) for i in range(16) for w_ in (0, 1)]
    def Bf(i, w_, q3):
        d = i >> 2; ks = i & 3
        if d in (0, 3): return Qf(3 * w_ + q3, ks)
        return AG + (d - 1) * 96 + ((3 * w_ + q3) * 4 + ks) * 4
    def setaddr(n):
        i, w_ = H[n]
        return [f"s_add_u32 s{t2}, s{sOth if w_ else sOwn}, {slot_of[i]*UNIT}\nv_add_u32 v{aC[0]}, s{t2}, v{aB[0]}",
                f"v_add_u32 v{aC[1]}, s{t2}, v{aB[1]}\nv_add_u32 v{aC[2]}, s{t2}, v{aB[2]}", f"v_add_u32 v{aC[3]}, s{t2}, v{aB[3]}"]
    def rda(nb): return "\n".join(f"ds_read_b64_tr_b16 {R(AF+nb*4+2*e,2)}, v{aC[nb&3]} offset:{(nb>>2)*4096 + e*2048}" for e in range(2))
    def ldB(d):
        L_ = []
        pre_ = f"s_add_u32 s{t0}, s{sNG}, {d}\ns_and_b32 s{t0}, s{t0}, 3\ns_lshl_b32 s{t0}, s{t0}, 1\ns_lshl_b32 s{t1}, s{sKQ}, 3\ns_add_u32 s{t0}, s{t0}, s{t1}\ns_add_u32 s{t0}, s{t0}, s{sHS}\n"
        pre_ += f"s_lshl_b32 s{t1}, s{sB}, 5\ns_add_u32 s{t0}, s{t0}, s{t1}\ns_xor_b32 s{t1}, s{t0}, 1\ns_lshl_b32 s{t0}, s{t0}, 2\ns_lshl_b32 s{t1}, s{t1}, 2\ns_add_u32 s{t0}, s{t0}, s{sJ}\ns_add_u32 s{t1}, s{t1}, s{sJ}\n"
        pre_ += f"s_mul_i32 s{t0}, s{t0}, 12288\ns_mul_i32 s{t1}, s{t1}, 12288\n"
        for ks in range(4):
            for w_ in range(2):
                for q3 in range(3):
                    tx = f"buffer_load_dwordx4 {R(Bf(4*d+ks, w_, q3),4)}, v{vL16}, {OD}, s{t0+w_} offen offset:{q3*1024}{opt.bld}"
                    if q3 == 2: tx += f"\ns_add_u32 s{t0+w_}, s{t0+w_}, 3072"
                    L_.append(pre_ + tx); pre_ = ""
        return L_
    def spin(name, load, cmpv):
        I(f"s_mov_b32 s{t3}, 0x200000")
        A.label(f"L_spin{name}")
        I(load); I("s_waitcnt vmcnt(0)")
        I(cmpv)
        I(f"s_cmp_eq_u64 vcc, exec\ns_cbranch_scc1 L_go{name}")
        I(f"s_sleep 2\ns_sub_u32 s{t3}, s{t3}, 1\ns_cmp_lg_u32 s{t3}, 0\ns_cbranch_scc1 L_spin{name}")
        A.label(f"L_go{name}")
    I("v_and_b32 v248, v248, v249\nv_and_b32 v250, v250, v251\nv_and_b32 v248, v248, v250")
    I(f"v_cmp_eq_u32 vcc, 0x01010101, v248\ns_cmp_eq_u64 vcc, exec\ns_cbranch_scc1 L_goC")
    sv = (list(A.vm), list(A.lg))
    I(f"s_lshl_b32 s{t0}, s{sB}, 4\nv_mov_b32 v{TMP}, 0")
    spin("C", f"buffer_load_dwordx4 v[248:251], v{TMP}, {DBD}, s{t0} offen sc1", "v_and_b32 v248, v248, v249\nv_and_b32 v250, v250, v251\nv_and_b32 v248, v248, v250\nv_cmp_eq_u32 vcc, 0x01010101, v248")
    A.vm, A.lg = sv
    lane0(248)
    I(f"v_mov_b32 v249, 1\nv_and_b32 v250, 3, v0\nv_lshlrev_b32 v251, 9, v250\nv_lshlrev_b32 v250, 7, v250")
    for x in setaddr(0): I(x)
    I("s_waitcnt lgkmcnt(0)")
    A.wait_vm_tag(*[("wo", i) for i in range(4)])
    I("s_barrier")
    for nb in range(9): I(rda(nb))
    for f in range(12): I(f"ds_read_b128 {v(Qf(3 + f % 3, f // 3),4)}, v{vT+1 if f < 8 else vT+2} offset:{(f%8)*1024}")
    I("s_waitcnt lgkmcnt(0)")
    free = []; nxt = 4; Bq = []; Wq = []
    for n, (i, w_) in enumerate(H):
        A.comment(f"oproj half-step {n}")
        if n % 2 == 1 and n < 31:
            if H[n + 1][0] >= 4: A.wait_vm_tag(("wo", H[n + 1][0]))
            if n == opt.fl: A.wait_vm_tag("ost")
            I("s_barrier")
            if n == opt.fl:
                I(f"s_lshl_b32 s{t0}, s{sID}, 7\ns_add_u32 s{t0}, s{t0}, {FLAGS}")
                I(f"buffer_store_dword v249, v248, {OD}, s{t0} offen sc1", tag="f1")
                stamp(5)
            free.append(XSL if n == 1 else slot_of[i - 1])
        if n == opt.pl:
            I(f"s_and_b32 s{t0}, s{sID}, 0xfc\ns_lshl_b32 s{t0}, s{t0}, 7\ns_add_u32 s{t0}, s{t0}, {FLAGS}")
            spin("1", f"buffer_load_dword v{TMP}, v250, {OD}, s{t0} offen sc1", f"v_cmp_eq_u32 vcc, 1, v{TMP}")
            stamp(6)
            Bq = ldB(1) + ldB(2) + ldB(3)
        SC = Sched(A)
        while free and nxt < 16:
            slot_of[nxt] = free.pop(0); Wq += dma_wo(nxt, slot_of[nxt]); nxt += 1
        nb_ = opt.b0 if n < 9 else opt.b1
        if n >= 8: assert 72 - len(Bq) >= (n - 7) * 3
        if n < 8 and n >= opt.pl: assert 72 - len(Bq) + nb_ <= 48
        D1 = [(x, "B") for x in Bq[:nb_]]; Bq = Bq[nb_:]
        D2 = Wq[:3]; Wq = Wq[3:]
        D = []
        while D1 or D2:
            if D1: D.append(D1.pop(0))
            if D1 and len(D1) > 2 * len(D2): D.append(D1.pop(0))
            if D2: D.append(D2.pop(0))
        if n + 1 < len(H):
            for x in setaddr(n + 1): SC.add("va", x, cost=2, d=2)
            for nb in range(9): SC.add("rd", rda(nb), cost=2, e=3 * nb + 2)
        if opt.tl == 2:
            I(f"s_memrealtime s[100:101]\ns_waitcnt lgkmcnt(0)\nv_writelane_b32 v10, s100, {n}")
        if n > 0: SC.before(0, "s_waitcnt lgkmcnt(4)")
        for k, (x, tag) in enumerate(D): SC.add("sa", x, cost=2, e=3 + (k * 23) // len(D), tag=tag)
        mf = [f"{MF} {v(acc(q3,nb),4)}, {R(AF+nb*4,4)}, {R(Bf(i,w_,q3),4)}, " + ("0" if n == 0 else v(acc(q3, nb), 4)) for nb in range(9) for q3 in range(3)]
        SC.run(mf)
    assert not Wq
    assert nxt == 16 and not Bq
    stamp(7)
    KS = [s_ for s_ in range(NS) if s_ not in (slot_of[15], slot_of[14])][0]
    I(f"v_add_u32 v{vT}, {KS*UNIT}, v{vL16}")
    I(f"s_cmp_eq_u32 s{sJ}, s{sKQ}\ns_cbranch_scc1 L_keep")
    PK = 152
    I(f"s_lshl_b32 s{t0}, s{sB}, 2\ns_add_u32 s{t0}, s{t0}, s{sNG}\ns_lshl_b32 s{t0}, s{t0}, 2\ns_add_u32 s{t0}, s{t0}, s{sJ}\ns_lshl_b32 s{t0}, s{t0}, 2\ns_add_u32 s{t0}, s{t0}, s{sKQ}\ns_lshl_b32 s{t0}, s{t0}, 14\ns_add_u32 s{t0}, s{t0}, {PART}")
    I(f"v_lshlrev_b32 v{vT+1}, 3, v0")
    for q3 in range(3):
        for t_ in range(4):
            d = PK + (q3 * 4 + t_) * 4; o = acc(q3, 2 * t_)
            for kk in range(4): I(f"v_cvt_pk_bf16_f32 v{d+kk}, v{o+2*kk}, v{o+2*kk+1}")
            I(f"buffer_store_dwordx4 {v(d,4)}, v{vL16}, {OD}, s{t0} offen offset:{t_*1024} sc1")
        I(f"s_add_u32 s{t0}, s{t0}, 4096")
    for q3 in range(3):
        d = PK + 48 + 2 * q3; o = acc(q3, 8)
        I(f"v_cvt_pk_bf16_f32 v{d}, v{o}, v{o+1}\nv_cvt_pk_bf16_f32 v{d+1}, v{o+2}, v{o+3}")
        I(f"buffer_store_dwordx2 {v(d,2)}, v{vT+1}, {OD}, s{t0} offen offset:{q3*512} sc1")
    I("s_branch L_join")
    A.label("L_keep")
    A.hist = []
    I("s_nop 7")
    for f in range(27): I(f"ds_write_b128 v{vT}, {v(GA+4*f,4)} offset:{f*1024}")
    A.label("L_join")
    I("s_waitcnt vmcnt(0) lgkmcnt(0)\ns_barrier")
    I(f"s_lshl_b32 s{t0}, s{sID}, 7\ns_add_u32 s{t0}, s{t0}, {FLAGS+4}")
    I(f"buffer_store_dword v249, v248, {OD}, s{t0} offen sc1")
    stamp(8)
    SUM = 16
    I(f"s_lshl_b32 s{t1}, s{sW}, 11\ns_min_u32 s{t2}, s{sW}, 2\ns_mul_i32 s{t3}, s{t2}, 9216\ns_add_u32 s{t3}, s{t3}, 8192")
    I(f"v_add_u32 v{vT+1}, s{t1}, v{vT}\nv_add_u32 v{vT}, s{t3}, v{vT}")
    for q3 in range(3):
        for e in range(2): I(f"ds_read_b128 {v(SUM+(q3*2+e)*4,4)}, v{vT+1} offset:{q3*9216+e*1024}")
    I(f"ds_read_b128 {v(SUM+24,4)}, v{vT}")
    I(f"s_and_b32 s{t0}, s{sID}, 0xf3\ns_lshl_b32 s{t0}, s{t0}, 7\ns_add_u32 s{t0}, s{t0}, {FLAGS+4}")
    spin("2", f"buffer_load_dword v{TMP}, v251, {OD}, s{t0} offen sc1", f"v_cmp_eq_u32 vcc, 1, v{TMP}")
    stamp(9)
    I(f"s_lshl_b32 s{t0}, s{sB}, 2\ns_add_u32 s{t0}, s{t0}, s{sNG}\ns_lshl_b32 s{t0}, s{t0}, 2\ns_add_u32 s{t0}, s{t0}, s{sKQ}\ns_lshl_b32 s{t0}, s{t0}, 16\ns_add_u32 s{t0}, s{t0}, {PART}")
    I(f"s_lshl_b32 s{t1}, s{sW}, 10\ns_lshl_b32 s{t2}, s{t2}, 9\ns_add_u32 s{t2}, s{t2}, 12288")
    I(f"v_add_u32 v{vT}, s{t1}, v{vL16}\nv_add_u32 v{vT+1}, 4096, v{vT}\nv_add_u32 v{vT+2}, 8192, v{vT}\nv_lshlrev_b32 v{vMx}, 3, v0\nv_add_u32 v{vMx}, s{t2}, v{vMx}")
    LD = 64
    for d in range(1, 4):
        I(f"s_add_u32 s{t1}, s{sKQ}, {d}\ns_and_b32 s{t1}, s{t1}, 3\ns_lshl_b32 s{t1}, s{t1}, 14\ns_add_u32 s{t1}, s{t1}, s{t0}")
        for q3 in range(3): I(f"buffer_load_dwordx4 {v(LD+(d-1)*16+q3*4,4)}, v{vT+q3}, {OD}, s{t1} offen sc1")
        I(f"buffer_load_dwordx2 {v(LD+(d-1)*16+12,2)}, v{vMx}, {OD}, s{t1} offen sc1")
    I(f"v_and_b32 v{vDe}, 15, v0\nv_mul_u32_u24 v{vDe}, 1152, v{vDe}\nv_lshrrev_b32 v{vDo}, 4, v0\nv_lshl_add_u32 v3, v{vDo}, 3, v{vDe}\nv_lshl_add_u32 v{vDe}, v{vDo}, 4, v{vDe}")
    I(f"s_lshl_b32 s{t0}, s{sB}, 2\ns_add_u32 s{t0}, s{t0}, s{sKQ}\ns_mul_i32 s{t0}, s{t0}, {48*1152}\ns_mul_i32 s{t1}, s{sNG}, 288\ns_add_u32 s{t0}, s{t0}, s{t1}")
    I(f"s_mul_i32 s{t2}, s{sW}, {16*1152}\ns_add_u32 s{t2}, s{t2}, s{t0}\ns_add_u32 s{t2}, s{t2}, 256\ns_cmp_eq_u32 s{sW}, 3\ns_cselect_b32 s{t2}, 0x40000000, s{t2}")
    I(f"s_lshl_b32 s{t1}, s{sW}, 6\ns_add_u32 s{t0}, s{t0}, s{t1}")
    for d in range(3):
        for kk in range(14):
            x = LD + d * 16 + kk
            I(f"v_lshlrev_b32 v{TMP+(kk%2)*2}, 16, v{x}\nv_and_b32 v{TMP+(kk%2)*2+1}, 0xffff0000, v{x}")
            I(f"v_pk_add_f32 v[{SUM+2*kk}:{SUM+2*kk+1}], v[{SUM+2*kk}:{SUM+2*kk+1}], v[{TMP+(kk%2)*2}:{TMP+(kk%2)*2+1}]")
    for kk in range(14): I(f"v_cvt_pk_bf16_f32 v{PK+kk}, v{SUM+2*kk}, v{SUM+2*kk+1}")
    for sw in ("32", "16"):
        for q3 in range(3):
            d = PK + 4 * q3
            I(f"v_permlane{sw}_swap_b32 v{d}, v{d+2}\nv_permlane{sw}_swap_b32 v{d+1}, v{d+3}")
    for q3 in range(3):
        I(f"buffer_store_dwordx4 {v(PK+4*q3,4)}, v{vDe}, {OUTD}, s{t0} offen")
        I(f"s_add_u32 s{t0}, s{t0}, {16*1152}")
    I(f"buffer_store_dwordx2 {v(PK+12,2)}, v3, {OUTD}, s{t2} offen")
    if opt.stamps:
        I("s_waitcnt vmcnt(0)")
        stamp(10); stamp(11)
        I("s_mov_b32 s34, 0x20000000")
        if opt.tl:
            I(f"s_lshl_b32 s{t0}, s2, 2\ns_add_u32 s{t0}, s{t0}, s{sW}\ns_lshl_b32 s{t0}, s{t0}, 8\ns_add_u32 s{t0}, s{t0}, 0x11000000\nv_lshlrev_b32 v11, 2, v0")
            I(f"buffer_store_dword v10, v11, {OD}, s{t0} offen")
        I(f"s_cmp_lg_u32 s{sW}, 0\ns_cbranch_scc1 L_end")
        I(f"s_mul_i32 s{t0}, s2, {NST*8}\ns_add_u32 s{t0}, s{t0}, {STAMP_OFF}\nv_mov_b32 v18, 0")
        for i in range(NST):
            I(f"v_mov_b32 v16, s{SST+2*i}\nv_mov_b32 v17, s{SST+2*i+1}")
            I(f"buffer_store_dwordx2 v[16:17], v18, {OD}, s{t0} offen offset:{8*i}\ns_waitcnt vmcnt(0)")
    A.label("L_end")
    I("s_endpgm")
    for qa, t in sites:
        A.label(f"L_stub{qa}_{t}")
        I(f"s_call_b64 s[{sRet}:{sRet+1}], L_rare{qa}\ns_branch L_back{qa}_{t}")
    for qa in (0, 2, 4):
        A.label(f"L_rare{qa}")
        A.hist = []
        for qb in (qa, qa + 1):
            b = S + qb * 8; m, t_ = vMx, vT
            I(f"v_max3_f32 v{m}, v{b}, v{b+1}, v{b+2}\nv_max3_f32 v{m}, v{m}, v{b+3}, v{b+4}\nv_max3_f32 v{m}, v{m}, v{b+5}, v{b+6}\nv_max_f32 v{m}, v{m}, v{b+7}")
            I(f"v_mov_b32 v{t_}, v{m}\nv_permlane32_swap_b32 v{t_}, v{m}\nv_max_f32 v{m}, v{m}, v{t_}")
            I(f"v_mov_b32 v{t_}, v{m}\nv_permlane16_swap_b32 v{t_}, v{m}\nv_max_f32 v{m}, v{m}, v{t_}")
            I(f"v_max_f32 v{m}, 0, v{m}")
            for k in range(8): I(f"v_sub_f32 v{b+k}, v{b+k}, v{m}")
            for k in range(4): I(f"v_sub_f32 v{NEG+4*qb+k}, v{NEG+4*qb+k}, v{m}")
            I(f"v_sub_f32 v{t_}, 0, v{m}\nv_exp_f32 v{t_}, v{t_}")
            for r_ in [L + 4 * qb + k for k in range(4)] + [Of(qb, 0) + k for k in range(32)]:
                I(f"v_accvgpr_read_b32 v{t_+1}, {R(r_)}\nv_mul_f32 v{t_+1}, v{t_+1}, v{t_}\nv_accvgpr_write_b32 {R(r_)}, v{t_+1}")
        I(f"s_setpc_b64 s[{sRet}:{sRet+1}]")
    A.label("L_last")
    I("s_endpgm")
    return A.text()

REF = "standalone__mha_block_cached__near_ridge.s.ref"
HDR = open(REF).read().split("; Override")[0] if os.path.exists(REF) else ""

def main():
    ap = argparse.ArgumentParser()
    ap.add_argument("-o", default="k.s")
    ap.add_argument("--stamps", action="store_true")
    ap.add_argument("--tl", type=int, default=0)
    ap.add_argument("--xw", default=""); ap.add_argument("--wld", default="")
    ap.add_argument("--kvpos", type=int, default=2)
    ap.add_argument("--rpf", type=int, default=2)
    ap.add_argument("--hdu", type=int, default=4)
    ap.add_argument("--xu", type=int, default=0)
    ap.add_argument("--lat", type=int, default=3)
    ap.add_argument("--brd", type=int, default=2)
    ap.add_argument("--dsp", type=int, default=3)
    ap.add_argument("--tend", type=float, default=30.3)
    ap.add_argument("--fl", type=int, default=3)
    ap.add_argument("--pl", type=int, default=6)
    ap.add_argument("--cpf", type=int, default=1)
    ap.add_argument("--wpf", type=int, default=-2)
    ap.add_argument("--wpp", default="")
    ap.add_argument("--b0", type=int, default=8)
    ap.add_argument("--b1", type=int, default=4)
    ap.add_argument("--cp", type=int, default=3)
    ap.add_argument("--cpp", default="")
    ap.add_argument("--kvw", default="0,0,3,0,3,0,3,0,3,0,3,0,4,0,5,4,4")
    ap.add_argument("--wps", type=int, default=2)
    ap.add_argument("--bld", default="sc1")
    ap.add_argument("--hb", type=int, default=1)
    ap.add_argument("--hn0", type=int, default=32)
    ap.add_argument("--hn1", type=int, default=4)
    ap.add_argument("--win", type=int, default=3)
    ap.add_argument("--kf", default="nt"); ap.add_argument("--vf", default="nt")
    opt = ap.parse_args()
    opt.kvw = [int(x) for x in opt.kvw.split(",")]
    for k in ("wld", "xw", "wpp", "cpp", "bld", "kf", "vf"): setattr(opt, k, (" " + getattr(opt, k)) if getattr(opt, k) else "")
    txt = HDR + f"; @launch grid=(256,1,1) block=(256,1,1) lds={LDS1}\n"
    txt += '.amdgcn_target "amdgcn-amd-amdhsa--gfx950"\n.text\n' + gen(opt)
    txt += f""".section .rodata,"a"
.p2align 6
.amdhsa_kernel {KN}
  .amdhsa_next_free_vgpr 512
  .amdhsa_next_free_sgpr 102
  .amdhsa_accum_offset 256
  .amdhsa_group_segment_fixed_size 0
  .amdhsa_kernarg_size 64
  .amdhsa_user_sgpr_count 2
  .amdhsa_user_sgpr_kernarg_segment_ptr 1
  .amdhsa_system_sgpr_workgroup_id_x 1
.end_amdhsa_kernel
"""
    open(opt.o, "w").write(txt)
main()
```
